```python
import torch

def _softmax(x, axis=-1):
    return torch.softmax(x, dim=axis)
def _gelu(x):
    return torch.nn.functional.gelu(x, approximate="tanh")
def _silu(x):
    return torch.nn.functional.silu(x)
def _sigmoid(x):
    return torch.sigmoid(x)
def _layernorm(x, axis=-1, eps=1e-5):
    m = x.mean(dim=axis, keepdim=True)
    v = x.var(dim=axis, keepdim=True, unbiased=False)
    return (x - m) / torch.sqrt(v + eps)
def _scatter_add(tgt, idx, src, axis=0):
    return tgt.clone().index_add_(axis, idx, src)
def _segment_sum(src, seg, n):
    out = torch.zeros((n,) + src.shape[1:], dtype=src.dtype)
    return out.index_add_(0, seg, src)
def _pad(x, pw):
    flat = tuple(v for pair in reversed(pw) for v in pair)
    return torch.nn.functional.pad(x, flat)

kernel_name = 'gated_mix__grouped_kv_mqa__moe_arch_mod__prompt'

def setup_inputs():

    _w = (lambda a: (lambda t: t.to(torch.bfloat16) if t.is_floating_point() else t)(torch.as_tensor(a)))
    def _A_setup():
        B, S, D, H = 1, 2048, 640, 32
        Dh = D // H
        return {
            "x": _w((lambda *s: torch.randn(*s, dtype=torch.bfloat16) * 0.05)(B, S, D)),
            "wq": _w((lambda *s: torch.randn(*s, dtype=torch.bfloat16) * 3.2)(D, H * Dh)),
            "wk": _w((lambda *s: torch.randn(*s, dtype=torch.bfloat16) * 3.2)(D, Dh)),
            "wv": _w((lambda *s: torch.randn(*s, dtype=torch.bfloat16) * 0.4)(D, Dh)),
            "wo": _w((lambda *s: torch.randn(*s, dtype=torch.bfloat16) * 0.4)(H * Dh, D)),
        }
    _A_in = _A_setup()

    def _B_setup():
        B, S, D, F, C = 1, 2048, 640, 1728, 1
        return {
            "x": _w((lambda *s: torch.randn(*s, dtype=torch.bfloat16) * 0.05)(B, S, D)),
            "w_r": _w((lambda *s: torch.randn(*s, dtype=torch.bfloat16) * 1.6)(D)),
            "w_gate": _w((lambda *s: torch.randn(*s, dtype=torch.bfloat16) * 0.8)(D, F)),
            "w_up": _w((lambda *s: torch.randn(*s, dtype=torch.bfloat16) * 0.8)(D, F)),
            "w_down": _w((lambda *s: torch.randn(*s, dtype=torch.bfloat16) * 0.8)(F, D)),
        }
    _B_in = _B_setup()

    return {
        "A_x": _A_in["x"],
        "A_wq": _A_in["wq"],
        "A_wk": _A_in["wk"],
        "A_wv": _A_in["wv"],
        "A_wo": _A_in["wo"],
        "B_x": _B_in["x"],
        "B_w_r": _B_in["w_r"],
        "B_w_gate": _B_in["w_gate"],
        "B_w_up": _B_in["w_up"],
        "B_w_down": _B_in["w_down"],
        "gate_w": _w((lambda *s: torch.randn(*s, dtype=torch.bfloat16) * 0.05)(640) * 16.0),
    }

def reference(A_x, A_wq, A_wk, A_wv, A_wo, B_x, B_w_r, B_w_gate, B_w_up, B_w_down, gate_w):
    def _A_ref(x, wq, wk, wv, wo):
        B, S, D = x.shape
        H = 32
        Dh = D // H
        q = (lambda x, *d: x.permute(*d))((x @ wq).reshape(B, S, H, Dh), 0, 2, 1, 3)
        k = x @ wk
        v = x @ wv
        scores = torch.einsum("bhqd,bkd->bhqk", q, k) * (Dh ** -0.5)
        p = _softmax(scores, axis=-1)
        o = torch.einsum("bhqk,bkd->bhqd", p, v)
        return (lambda x, *d: x.permute(*d))(o, 0, 2, 1, 3).reshape(B, S, H * Dh) @ wo

    def _B_ref(x, w_r, w_gate, w_up, w_down):
        B, S, D = x.shape
        C = 1
        r = x @ w_r
        idx = torch.argsort(-r, axis=-1)[:, :C]
        idx_e = (lambda x, n, axis: torch.repeat_interleave(x, n, dim=axis))(idx.reshape(B, C, 1), D, axis=2)
        x_sel = (lambda x, i, axis: torch.take_along_dim(x, i, dim=axis))(x, idx_e, axis=1)
        g = _silu(x_sel @ w_gate)
        u = x_sel @ w_up
        y = (g * u) @ w_down
        r_sel = _sigmoid((lambda x, i, axis: torch.take_along_dim(x, i, dim=axis))(r, idx, axis=1))
        y = y * r_sel.reshape(B, C, 1)
        b_off = (torch.arange(B) * S).reshape(B, 1)
        flat_idx = (idx + b_off).reshape(B * C)
        zero = (x * 0.0).reshape(B * S, D)
        upd = _scatter_add(zero, flat_idx, y.reshape(B * C, D), axis=0)
        return x + upd.reshape(B, S, D)

    x = A_x
    g = _sigmoid((x * gate_w).sum(-1, keepdims=True))
    a = _A_ref(x, A_wq, A_wk, A_wv, A_wo)
    b = _B_ref(x, B_w_r, B_w_gate, B_w_up, B_w_down)
    return g * a + (1 - g) * b
```

```python
import re

TRANS = ("v_exp_", "v_log_", "v_rcp_", "v_rsq_", "v_sqrt_", "v_sin_", "v_cos_")

def regs_of(tok):
    tok = tok.strip().lstrip("-").strip("|")
    if tok.startswith("abs(") : tok = tok[4:-1]
    m = re.fullmatch(r"v(\d+)", tok)
    if m: return {int(m.group(1))}, set()
    m = re.fullmatch(r"v\[(\d+):(\d+)\]", tok)
    if m: return set(range(int(m.group(1)), int(m.group(2)) + 1)), set()
    m = re.fullmatch(r"s(\d+)", tok)
    if m: return set(), {int(m.group(1))}
    m = re.fullmatch(r"s\[(\d+):(\d+)\]", tok)
    if m: return set(), set(range(int(m.group(1)), int(m.group(2)) + 1))
    if tok in ("vcc", "vcc_lo", "vcc_hi"): return set(), {"vcc"}
    if tok in ("exec", "exec_lo", "exec_hi"): return set(), {"exec"}
    if tok == "m0": return set(), {"m0"}
    return set(), set()

class I:
    def __init__(s, text):
        s.text = text
        t = text.split(";")[0].strip()
        s.mn = t.split()[0]
        rest = t[len(s.mn):].strip()
        parts = [p.strip() for p in rest.split(",")] if rest else []
        s.mods = ""
        if parts:
            last = parts[-1].split()
            parts[-1] = last[0] if last else ""
            s.mods = " ".join(last[1:])
        s.ops = parts
        mn = s.mn
        s.vw = set(); s.vr = set(); s.sw = set(); s.sr = set()
        s.A = set(); s.C = set(); s.passes = 0; s.data = set()
        s.states = 1
        R = [regs_of(p) for p in parts]
        def rd(i):
            s.vr |= R[i][0]; s.sr |= R[i][1]
        def wr(i):
            s.vw |= R[i][0]; s.sw |= R[i][1]
        if mn.startswith("v_mfma") or mn.startswith("v_smfmac"):
            s.kind = "mfma"
            s.passes = 8 if "32x32" in mn else 4
            wr(0)
            if mn.startswith("v_smfmac"):
                s.C = set(R[0][0]); s.A = R[1][0] | R[2][0] | R[3][0]
            else:
                s.C = set(R[3][0]); s.A = R[1][0] | R[2][0]
            s.vr = s.A | s.C
        elif mn.startswith("v_"):
            s.kind = "valu"
            if mn == "v_nop":
                pass
            elif "permlane" in mn:
                wr(0); wr(1); rd(0); rd(1)
            else:
                wr(0)
                st = 1
                if mn.startswith(("v_add_co", "v_sub_co", "v_addc_co", "v_subb_co")):
                    wr(1); st = 2
                for i in range(st, len(parts)): rd(i)
                if mn.startswith(("v_fmac", "v_dot2c", "v_writelane")) or "dpp" in mn: rd(0)
        elif mn.startswith("ds_"):
            s.kind = "ds"
            if mn.startswith(("ds_read", "ds_bpermute", "ds_permute", "ds_swizzle")) or "_rtn_" in mn:
                wr(0)
                for i in range(1, len(parts)): rd(i)
            else:
                for i in range(len(parts)): rd(i)
            if "addtid" in mn: s.sr.add("m0")
        elif mn.startswith(("buffer_", "global_")):
            s.kind = "vmem"
            if mn in ("buffer_inv", "buffer_wbl2"):
                pass
            elif "load" in mn and "lds" in s.mods.split():
                for i in range(len(parts)): rd(i)
                s.sr.add("m0")
            elif "load" in mn:
                wr(0)
                for i in range(1, len(parts)): rd(i)
            else:
                for i in range(len(parts)): rd(i)
                if mn.endswith(("x3", "x4")): s.data = set(R[0][0])
        elif mn.startswith(("s_load", "s_buffer_load", "s_memtime", "s_memrealtime")):
            s.kind = "smem"
            wr(0)
            for i in range(1, len(parts)): rd(i)
        else:
            s.kind = "salu"
            if mn == "s_nop":
                s.states = int(parts[0], 0) + 1
            elif mn.startswith(("s_cmp", "s_bitcmp", "s_cbranch", "s_branch", "s_waitcnt", "s_barrier", "s_setprio", "s_sleep", "s_endpgm")):
                for i in range(len(parts)): rd(i)
            elif parts:
                wr(0)
                for i in range(1, len(parts)): rd(i)
                if "saveexec" in mn: s.sw.add("exec")
        s.trans = mn.startswith(TRANS)
        s.dpp = "dpp" in mn
        s.lane = mn.startswith(("v_readlane", "v_readfirstlane"))
        s.perm = "permlane" in mn

def need(p, c):
    n = 0
    if p.kind == "valu":
        if c.kind == "mfma" and p.vw & c.vr: n = max(n, 2)
        if c.kind == "valu":
            if p.trans and not c.trans and p.vw & c.vr: n = max(n, 1)
            if c.lane and p.vw & c.vr: n = max(n, 1)
            if (c.dpp or c.perm) and p.vw & c.vr: n = max(n, 2)
            if p.sw & c.sr:
                n = max(n, 4 if c.mn.startswith(("v_readlane", "v_writelane")) else 2)
        if c.kind == "vmem" and p.sw & c.sr: n = max(n, 5)
        if c.kind in ("salu", "smem") and p.sw & c.sr: n = max(n, 1)
    if p.kind == "mfma":
        big = 12 if p.passes == 8 else 8
        if c.kind in ("valu", "ds", "vmem") and p.vw & (c.vr | c.vw): n = max(n, big)
        if c.kind == "mfma":
            if p.vw & c.A: n = max(n, big)
            if p.vw & c.C and not (p.vw == c.C and p.passes == c.passes):
                n = max(n, 10 if p.passes == 8 else 6)
        if c.kind == "valu" and p.C & c.vw: n = max(n, 7 if p.passes == 8 else 3)
    if p.kind == "salu" and "m0" in p.sw and "m0" in c.sr and c.kind in ("vmem", "ds"): n = max(n, 1)
    if p.kind == "vmem" and p.data and p.data & c.vw: n = max(n, 2)
    if p.kind in ("ds", "vmem") and c.dpp and p.vw & c.vr: n = max(n, 0)
    return n

class Asm:
    def __init__(s):
        s.items = []
        s.pads = 0
    def hist(s, items):
        out = []
        for it in reversed(items):
            if isinstance(it, I):
                if it.mn in ("s_branch", "s_endpgm"): break
                out.append(it)
                if len(out) > 16: break
        return out
    def __call__(s, text):
        for line in text.split("\n"):
            t = line.strip()
            if not t or t.startswith(";"):
                if t: s.items.append(("raw", t))
                continue
            if t.endswith(":"):
                s.items.append(("label", t[:-1])); continue
            if t.startswith("."):
                s.items.append(("raw", t)); continue
            ins = I(t)
            d = 0; short = 0
            for p in s.hist(s.items):
                short = max(short, need(p, ins) - d)
                d += p.states
            if short > 0:
                s.items.append(I(f"s_nop {short-1}")); s.pads += 1
            s.items.append(ins)
    def check_edges(s):
        pos = {it[1]: i for i, it in enumerate(s.items) if not isinstance(it, I) and it[0] == "label"}
        bad = []
        for i, it in enumerate(s.items):
            if isinstance(it, I) and it.mn.startswith(("s_branch", "s_cbranch")):
                tgt = pos[it.ops[0]]
                before = [it] + s.hist(s.items[:i])
                seq = []
                for c in s.items[tgt:]:
                    if not isinstance(c, I): continue
                    d = sum(x.states for x in seq)
                    if d > 14: break
                    for p in before:
                        if need(p, c) > d: bad.append((p.text, it.text, c.text, need(p, c) - d))
                        d += p.states
                    seq.append(c)
                    if c.mn in ("s_branch", "s_endpgm"): break
        return bad
    def text(s):
        out = []
        for it in s.items:
            if isinstance(it, I): out.append("    " + it.text)
            elif it[0] == "label": out.append(it[1] + ":")
            else: out.append("    " + it[1])
        return "\n".join(out) + "\n"
```

```python
import sys, struct, math
from asmlib import Asm

NAME = "gated_mix__grouped_kv_mqa__moe_arch_mod__prompt"

def f2u(x): return hex(struct.unpack("<I", struct.pack("<f", x))[0])

KV_OFF, KVF_OFF, RC_OFF, YF_OFF, Y2_OFF, Y2F_OFF, OF_OFF, YP_OFF, PROF_OFF, O_OFF = (
    0, 0x28000, 0x2A000, 0x2B000, 0x2D000, 0x2E000, 0x30000, 0x40000, 0xD0000, 0x100000)
WS_BYTES = 0x380000
XS, WR, WKV, VEC, QS, MISC = 0, 81920, 122880, 148480, 151040, 161280
CNT, REDO, SEL, GATE, BIAS = MISC, MISC + 4, MISC + 8, MISC + 256, MISC + 512
WO, OX, GI, XSEL, WD = 0, 102400, 124928, 145536, 151040
UI = GI + 10240 + 64
LDS_BYTES = 163840
SHIFT = 100.0
QSCALE = math.log2(math.e) / math.sqrt(20.0)

sW, sTB, sHG, sROT, sSTKV = 3, 4, 5, 6, 7
X, WQ, WKVd, WOd, WRd, GWd, WGd, WUd, WDd, OUT, DBG, WS = [8 + 4 * i for i in range(12)]
sNONCE, sTH, sJ, sKVO, sCNT, sSW, sPASS, sSPIN, sT0, sT1, sT2, sT3, sT4, sT5, sVM = 84, 85, 86, 87, 88, 89, 90, 91, 92, 93, 94, 95, 96, 97, 98
sTILE, sQB, sIDX, sPH = 100, 101, 56, 57
def srd(b): return f"s[{b}:{b+3}]"
def vr(b, n): return f"v[{b}:{b+n-1}]" if n > 1 else f"v{b}"

def gen(prof=False, spin=1 << 22, sw=2, force_redo=False):
    a = Asm()
    stamps = []
    def stamp(name):
        if prof:
            n = len(stamps); stamps.append(name)
            assert n < 12
            a(f"s_memrealtime s[{60+2*n}:{61+2*n}]")
    uid = [0]
    def lab(p):
        uid[0] += 1; return f"L_{p}_{uid[0]}"
    def poll(load, check):
        l, d = lab("poll"), lab("pdone")
        a(f"s_mov_b32 s{sSPIN}, {spin}\n{l}:\n{load}\ns_waitcnt vmcnt(0)\n{check}\ns_cbranch_scc1 {d}")
        a(f"s_sub_u32 s{sSPIN}, s{sSPIN}, 1\ns_cbranch_scc0 {l}\n{d}:")
    def get_nonce(vt):
        d = lab("nz")
        a(f"s_cmp_lg_u32 s{sNONCE}, 0\ns_cbranch_scc1 {d}")
        poll(f"buffer_load_dword v{vt}, off, {srd(DBG)}, 0 sc1",
             f"v_readfirstlane_b32 s{sNONCE}, v{vt}\ns_cmp_lg_u32 s{sNONCE}, 0")
        a(f"{d}:")
    def mod5(s, times=1):
        for _ in range(times):
            a(f"s_cmp_ge_u32 s{s}, 5\ns_cselect_b32 s{sT5}, 5, 0\ns_sub_u32 s{s}, s{s}, s{sT5}")

    a(f"""
    s_cmpk_lt_u32 s2, 256
    s_cbranch_scc0 L_end
    s_load_dwordx16 s[56:71], s[0:1], 0
    s_load_dwordx8 s[72:79], s[0:1], 64
    s_load_dwordx4 s[80:83], s[0:1], 96
    s_memrealtime s[{sT0}:{sT1}]
    v_lshrrev_b32 v1, 6, v0
    v_and_b32 v0, 63, v0
    v_readfirstlane_b32 s{sW}, v1
    s_and_b32 s{sTB}, s2, 31
    s_lshr_b32 s{sHG}, s2, 5
    s_lshr_b32 s{sROT}, s{sTB}, 3
    s_add_u32 s{sROT}, s{sROT}, s{sHG}
    s_lshr_b32 s{sSTKV}, s{sHG}, 1
    s_mov_b32 s{sNONCE}, 0
    s_mov_b32 s{sPASS}, 0
    """)
    mod5(sROT, 2)
    for b, n in ((X, 2621440), (WQ, 819200), (WKVd, 25600), (WOd, 819200), (WRd, 1280), (GWd, 1280),
                 (WGd, 2211840), (WUd, 2211840), (WDd, 2211840), (OUT, 2621440), (DBG, 256), (WS, WS_BYTES)):
        a(f"s_mov_b32 s{b+2}, {n}\ns_mov_b32 s{b+3}, 0x20000")
    a(f"""
    v_lshlrev_b32 v5, 4, v0
    v_lshlrev_b32 v6, 2, v0
    v_and_b32 v7, 15, v0
    v_lshrrev_b32 v8, 4, v0
    v_xor_b32 v9, v7, v8
    v_lshlrev_b32 v9, 4, v9
    v_mul_u32_u24 v10, 1280, v8
    v_add_u32 v1, v9, v10
    v_xor_b32 v2, 64, v9
    v_xor_b32 v3, 128, v9
    v_xor_b32 v4, 192, v9
    v_add_u32 v10, 4096, v10
    v_add_u32 v2, v2, v10
    v_add_u32 v10, 4096, v10
    v_add_u32 v3, v3, v10
    v_add_u32 v10, 4096, v10
    v_add_u32 v4, v4, v10
    v_lshl_add_u32 v9, v7, 8, v9
    v_mov_b32 v10, 0
    v_mov_b32 v11, 0
    v_mov_b32 v12, {CNT}
    ds_write_b64 v12, v[10:11]
    s_waitcnt lgkmcnt(0)
    s_mov_b64 s[{X}:{X+1}], s[56:57]
    s_bitcmp1_b32 s{sHG}, 0
    s_cselect_b64 s[{WKVd}:{WKVd+1}], s[62:63], s[60:61]
    s_mov_b64 s[{WRd}:{WRd+1}], s[68:69]
    s_mov_b64 s[{GWd}:{GWd+1}], s[76:77]
    s_mov_b64 s[{WQ}:{WQ+1}], s[58:59]
    s_mov_b64 s[{WOd}:{WOd+1}], s[64:65]
    s_mov_b64 s[{WGd}:{WGd+1}], s[70:71]
    s_mov_b64 s[{WUd}:{WUd+1}], s[72:73]
    s_mov_b64 s[{WDd}:{WDd+1}], s[74:75]
    s_mov_b64 s[{OUT}:{OUT+1}], s[78:79]
    s_mov_b64 s[{DBG}:{DBG+1}], s[80:81]
    s_mov_b64 s[{WS}:{WS+1}], s[82:83]
    """)
    if prof:
        a(f"s_mov_b32 s{sSW}, s{sT0}")
    stamp("karg")
    a(f"""
    s_cmp_ge_u32 s{sW}, 3
    s_cbranch_scc0 L_xload
    """)
    sKB, sPB = sT0, sT1
    a(f"""
    s_sub_u32 s{sKB}, s{sW}, 3
    s_add_u32 s{sPB}, s{sKB}, s{sROT}
    """)
    mod5(sPB)
    a(f"""
    s_lshl_b32 s{sT2}, s{sTB}, 2
    s_add_u32 s{sT2}, s{sT2}, s{sSTKV}
    s_mul_i32 s{sT2}, s{sT2}, 20480
    s_lshl_b32 s{sT3}, s{sPB}, 8
    s_add_u32 s{sT2}, s{sT2}, s{sT3}
    s_mul_i32 s{sT4}, s{sSTKV}, 5
    s_add_u32 s{sT4}, s{sT4}, s{sKB}
    s_lshl_b32 s{sT4}, s{sT4}, 12
    s_mov_b32 m0, s{sT4}
    """)
    for rq in range(4):
        a(f"buffer_load_dwordx4 v{1+rq}, {srd(X)}, s{sT2} offen offset:{rq*1024} lds")
    a(f"""
    s_mul_i32 s{sT5}, s{sKB}, 5120
    s_add_u32 s{sT5}, s{sT5}, {WKV}
    s_mov_b32 m0, s{sT5}
    s_mul_i32 s{sT2}, s{sPB}, 5120
    """)
    for i in range(4):
        a(f"buffer_load_dwordx4 v5, {srd(WKVd)}, s{sT2} offen offset:{i*1024} lds")
    a(f"""
    s_add_u32 m0, s{sT5}, 4096
    s_add_u32 s{sT2}, s{sT2}, 4096
    buffer_load_dwordx4 v5, {srd(WKVd)}, s{sT2} offen lds
    s_lshl_b32 s{sT2}, s{sKB}, 8
    s_add_u32 m0, s{sT2}, {VEC}
    s_nop 0
    buffer_load_dword v6, {srd(WRd)}, s{sT3} offen lds
    s_add_u32 m0, s{sT2}, {VEC+1280}
    s_nop 0
    buffer_load_dword v6, {srd(GWd)}, s{sT3} offen lds
    s_barrier
    """)
    a(f"""
    v_add_u32 v10, s{sT4}, v9
    v_xor_b32 v11, 64, v10
    v_xor_b32 v12, 128, v10
    v_xor_b32 v13, 192, v10
    v_lshrrev_b32 v14, 2, v7
    v_lshl_add_u32 v14, v8, 3, v14
    v_mul_u32_u24 v14, 40, v14
    v_add_u32 v14, s{sT5}, v14
    v_and_b32 v15, 3, v0
    s_bitcmp1_b32 s{sHG}, 0
    s_cselect_b32 s{sT2}, 3, 2
    s_cselect_b32 s{sT3}, 3, 4
    s_cselect_b32 s{sT4}, 32, 8
    v_min_u32 v15, s{sT2}, v15
    v_lshlrev_b32 v15, s{sT3}, v15
    v_add_u32 v14, v14, v15
    v_add_u32 v15, s{sT4}, v14
    s_lshl_b32 s{sT2}, s{sKB}, 11
    s_add_u32 s{sT2}, s{sT2}, {QS}
    v_add_u32 v16, s{sT2}, v5
    v_mov_b32 v17, {CNT}
    v_mov_b32 v18, 1
    s_waitcnt vmcnt(2)
    """)
    stamp("kvld")
    XF, WF, AC = 20, 36, 68
    for p in range(4):
        a(f"ds_read_b128 {vr(XF+4*p,4)}, v{10+p}")
        for c in range(2):
            for j in range(2):
                a(f"ds_read_b64_tr_b16 {vr(WF+8*p+4*c+2*j,2)}, v{14+c} offset:{1280*p+160*j}")
    a(f"s_bitcmp1_b32 s{sHG}, 0\ns_cbranch_scc1 L_kv_v")
    for isv in range(2):
        if isv: a("L_kv_v:")
        for p in range(4):
            a(f"s_waitcnt lgkmcnt({15-5*p})")
            for c in range(2):
                w_, x_ = vr(WF+8*p+4*c, 4), vr(XF+4*p, 4)
                A_, B_ = (x_, w_) if isv else (w_, x_)
                a(f"v_mfma_f32_16x16x32_bf16 {vr(AC+4*c,4)}, {A_}, {B_}, {vr(AC+4*c,4) if p else 0}")
        if not isv: a("s_branch L_kv_j")
    a(f"""
    L_kv_j:
    s_nop 7
    ds_write_b128 v16, {vr(AC,4)}
    ds_write_b128 v16, {vr(AC+4,4)} offset:1024
    s_waitcnt lgkmcnt(0)
    s_mov_b64 exec, 1
    ds_add_u32 v17, v18
    s_mov_b64 exec, -1
    s_cmp_eq_u32 s{sW}, 3
    s_cbranch_scc0 L_hwaves
    """)
    a(f"""
    s_buffer_load_dword s{sNONCE}, {srd(DBG)}, 0
    v_add_u32 v16, {QS}, v5
    s_lshl_b32 s{sT2}, s{sTB}, 1
    s_lshr_b32 s{sT3}, s{sSTKV}, 1
    s_add_u32 s{sT2}, s{sT2}, s{sT3}
    s_and_b32 s{sT3}, s{sSTKV}, 1
    s_and_b32 s{sT4}, s{sHG}, 1
    s_lshl_b32 s{sT4}, s{sT4}, 1
    s_add_u32 s{sT3}, s{sT3}, s{sT4}
    s_lshl2_add_u32 s{sT4}, s{sT2}, s{sT3}
    s_mul_i32 s{sT4}, s{sT4}, 640
    s_lshl_b32 s{sT2}, s{sT2}, 5
    s_add_u32 s{sT2}, s{sT2}, s{sT3}
    s_lshl_b32 s{sT2}, s{sT2}, 2
    s_add_u32 s{sT2}, s{sT2}, {KVF_OFF}
    s_mov_b32 s{sSPIN}, {spin}
    L_kv_spin:
    ds_read_b32 v19, v17
    s_waitcnt lgkmcnt(0)
    v_readfirstlane_b32 s{sT3}, v19
    s_cmp_eq_u32 s{sT3}, 5
    s_cbranch_scc1 L_kv_red
    s_sub_u32 s{sSPIN}, s{sSPIN}, 1
    s_cbranch_scc0 L_kv_spin
    L_kv_red:
    """)
    for k in range(1, 5):
        a(f"ds_read_b128 {vr(20+8*(k-1),4)}, v16 offset:{2048*k}\nds_read_b128 {vr(24+8*(k-1),4)}, v16 offset:{2048*k+1024}")
    for k in range(1, 5):
        a(f"s_waitcnt lgkmcnt({8-2*k})")
        for i in range(0, 8, 2):
            a(f"v_pk_add_f32 {vr(AC+i,2)}, {vr(AC+i,2)}, {vr(20+8*(k-1)+i,2)}")
    for i in range(4):
        a(f"v_cvt_pk_bf16_f32 v{20+i}, v{AC+2*i}, v{AC+2*i+1}")
    a(f"""
    s_bitcmp1_b32 s{sHG}, 0
    s_cbranch_scc1 L_kv_sv
    v_cmp_eq_u32 vcc, 3, v8
    s_mov_b32 exec_hi, 0
    buffer_store_dwordx4 v[20:23], v5, {srd(WS)}, s{sT4} offen sc1
    s_not_b64 exec, exec
    v_cndmask_b32 v24, v20, v21, vcc
    buffer_store_dword v24, v6, {srd(WS)}, s{sT4} offen offset:384 sc1
    s_branch L_kv_fl
    L_kv_sv:
    v_lshrrev_b32 v24, 5, v0
    v_mul_u32_u24 v24, 192, v24
    v_sub_u32 v24, v5, v24
    v_permlane16_swap_b32 v20, v22
    v_permlane16_swap_b32 v21, v23
    s_mov_b32 exec_lo, 0xfffff
    s_mov_b32 exec_hi, 0xfffff
    buffer_store_dwordx4 v[20:23], v24, {srd(WS)}, s{sT4} offen sc1
    L_kv_fl:
    s_mov_b64 exec, -1
    """)
    stamp("kvst")
    a("s_waitcnt vmcnt(0)")
    get_nonce(24)
    a(f"""
    v_mov_b32 v24, s{sNONCE}
    s_mov_b64 exec, 1
    buffer_store_dword v24, off, {srd(WS)}, s{sT2} sc1
    s_mov_b64 exec, -1
    """)
    stamp("kvfl")
    a("s_branch L_cwaves")

    a(f"""
    L_xload:
    s_or_b32 s{sT2}, s2, s{sW}
    s_cmp_eq_u32 s{sT2}, 0
    s_cbranch_scc0 L_nononce
    s_lshl_b32 s{sT1}, s{sT1}, 24
    s_xor_b32 s{sT0}, s{sT0}, s{sT1}
    s_or_b32 s{sT0}, s{sT0}, 1
    v_mov_b32 v10, s{sT0}
    s_mov_b64 exec, 1
    buffer_store_dword v10, off, {srd(DBG)}, 0 sc1
    s_mov_b64 exec, -1
    L_nononce:
    s_add_u32 s{sT0}, s{sSTKV}, s{sW}
    s_add_u32 s{sT0}, s{sT0}, 1
    s_and_b32 s{sT0}, s{sT0}, 3
    s_lshl2_add_u32 s{sT2}, s{sTB}, s{sT0}
    s_mul_i32 s{sT2}, s{sT2}, 20480
    s_mul_i32 s{sT0}, s{sT0}, 20480
    s_mov_b32 s{sT1}, s{sROT}
    s_mov_b32 s{sCNT}, 5
    s_barrier
    L_xl:
    s_mov_b32 m0, s{sT0}
    s_lshl_b32 s{sT3}, s{sT1}, 8
    s_add_u32 s{sT3}, s{sT3}, s{sT2}
    """)
    for rq in range(4):
        a(f"buffer_load_dwordx4 v{1+rq}, {srd(X)}, s{sT3} offen offset:{rq*1024} lds")
    a(f"s_add_u32 s{sT0}, s{sT0}, 4096\ns_add_u32 s{sT1}, s{sT1}, 1")
    mod5(sT1)
    a(f"""
    s_sub_u32 s{sCNT}, s{sCNT}, 1
    s_cmp_lg_u32 s{sCNT}, 0
    s_cbranch_scc1 L_xl
    s_waitcnt vmcnt(0)
    """)
    def w_read_base(vd, vt):
        a(f"""
        v_lshrrev_b32 v{vd}, 5, v0
        v_lshlrev_b32 v{vd}, 4, v{vd}
        v_bfe_u32 v{vt}, v0, 2, 3
        v_add_u32 v{vd}, v{vd}, v{vt}
        v_and_b32 v{vt}, 3, v0
        v_lshl_add_u32 v{vd}, v{vd}, 2, v{vt}
        v_mul_u32_u24 v{vd}, 40, v{vd}
        """)
    QA, QW, QX = 20, 40, 60
    a(f"""
    L_cwaves:
    s_mul_i32 s{sT0}, s{sW}, 20480
    v_add_u32 v10, s{sT0}, v9
    v_xor_b32 v11, 64, v10
    v_xor_b32 v12, 128, v10
    v_xor_b32 v13, 192, v10
    """)
    w_read_base(15, 14)
    for i in range(20): a(f"v_mov_b32 v{QA+i}, 0")
    a(f"""
    s_mov_b32 s{sT0}, {WR}
    s_mov_b32 s{sCNT}, 5
    s_barrier
    """)
    stamp("b3")
    a(f"""
    L_qloop:
    v_add_u32 v14, s{sT0}, v15
    s_barrier
    ds_read_b128 {vr(QX,4)}, v10
    """)
    def wrd(p, c):
        for j in range(2):
            a(f"ds_read_b64_tr_b16 {vr(QW+4*c+2*j,2)}, v14 offset:{5120*p+1280*j+8*c}")
    for c in range(5): wrd(0, c)
    for p in range(4):
        if p < 3: a(f"ds_read_b128 {vr(QX+4*((p+1)&1),4)}, v{11+p}")
        for c in range(5):
            a(f"s_waitcnt lgkmcnt({9 if p < 3 else 8-2*c})")
            a(f"v_mfma_f32_16x16x32_bf16 {vr(QA+4*c,4)}, {vr(QW+4*c,4)}, {vr(QX+4*(p&1),4)}, {vr(QA+4*c,4)}")
            if p < 3: wrd(p+1, c)
    for p in range(4): a(f"v_add_u32 v{10+p}, 4096, v{10+p}")
    a(f"""
    s_add_u32 s{sT0}, s{sT0}, 20480
    s_cmp_eq_u32 s{sT0}, {WR+3*20480}
    s_cselect_b32 s{sT0}, {WR}, s{sT0}
    s_sub_u32 s{sCNT}, s{sCNT}, 1
    s_cmp_lg_u32 s{sCNT}, 0
    s_cbranch_scc1 L_qloop
    s_mov_b32 s{sT0}, {f2u(QSCALE)}
    s_lshr_b32 s{sT1}, s{sW}, 1
    s_mul_i32 s{sT1}, s{sT1}, 5120
    s_add_u32 s{sT1}, s{sT1}, {QS}
    s_and_b32 s{sT2}, s{sW}, 1
    s_lshl_b32 s{sT2}, s{sT2}, 4
    v_mul_u32_u24 v10, 1280, v8
    v_add_u32 v10, s{sT1}, v10
    v_add_u32 v11, s{sT2}, v7
    v_lshl_add_u32 v12, v11, 2, v10
    v_lshl_add_u32 v11, v11, 4, v10
    """)
    for i in range(20): a(f"v_mul_f32 v{QA+i}, s{sT0}, v{QA+i}")
    for i in range(10): a(f"v_cvt_pk_bf16_f32 v{QW+i}, v{QA+2*i}, v{QA+2*i+1}")
    a(f"""
    ds_write_b128 v11, {vr(QW,4)}
    ds_write_b128 v11, {vr(QW+4,4)} offset:512
    ds_write_b32 v12, v{QW+8} offset:1024
    ds_write_b32 v12, v{QW+9} offset:1152
    s_branch L_qdone
    """)

    def w_src_offsets(vd, rowfn):
        a(f"s_mov_b32 s{sT5}, 0x1999999a")
        for i in range(5):
            a(f"""
            v_add_u32 v10, {64*i}, v0
            v_mul_hi_u32 v11, v10, s{sT5}
            v_mul_u32_u24 v12, 10, v11
            v_sub_u32 v10, v10, v12
            v_and_b32 v12, 19, v11
            v_bfe_u32 v13, v11, 2, 1
            v_lshl_or_b32 v12, v13, 3, v12
            v_bfe_u32 v13, v11, 3, 1
            v_lshl_or_b32 v12, v13, 2, v12
            """)
            for n, fn in enumerate(rowfn):
                fn(12, 13, 14)
                a(f"v_mul_u32_u24 v13, 1280, v13\nv_lshl_add_u32 v13, v10, 4, v13")
                a(f"v_subrev_u32 v{vd+5*n+i}, {1024*i if i < 4 else 0}, v13")
    def w_issue(vd, d, ssrc, sdst):
        a(f"s_mov_b32 m0, s{sdst}\ns_nop 0")
        for i in range(4):
            a(f"buffer_load_dwordx4 v{vd+i}, {srd(d)}, s{ssrc} offen offset:{1024*i} lds")
        a(f"s_add_u32 m0, s{sdst}, 4096\ns_nop 0\nbuffer_load_dwordx4 v{vd+4}, {srd(d)}, s{ssrc} offen lds")
    HA = 20
    sWB, sWPB, sWD = sT0, sT1, sT2
    def w_next():
        a(f"s_mul_i32 s{sT3}, s{sWPB}, {128*1280}\ns_add_u32 s{sT3}, s{sT3}, s{sWB}")
        w_issue(HA, WQ, sT3, sWD)
        a(f"s_add_u32 s{sWPB}, s{sWPB}, 1")
        mod5(sWPB)
        a(f"""
        s_add_u32 s{sWD}, s{sWD}, 20480
        s_cmp_ge_u32 s{sWD}, {WR+3*20480}
        s_cselect_b32 s{sT5}, {3*20480}, 0
        s_sub_u32 s{sWD}, s{sWD}, s{sT5}
        """)
    a("L_hwaves:")
    w_src_offsets(HA, [lambda k, r, t: a(f"v_mov_b32 v{r}, v{k}")])
    a(f"""
    s_sub_u32 s{sT4}, s{sW}, 4
    s_mul_i32 s{sWB}, s{sT4}, {32*1280}
    s_mul_i32 s{sT3}, s{sHG}, 160
    s_add_u32 s{sWB}, s{sWB}, s{sT3}
    s_mov_b32 s{sWPB}, s{sROT}
    s_mul_i32 s{sWD}, s{sT4}, 5120
    s_add_u32 s{sWD}, s{sWD}, {WR}
    """)
    w_next(); w_next()
    a(f"""
    s_mul_i32 s{sT3}, s{sT4}, 20480
    v_add_u32 v10, s{sT3}, v9
    v_xor_b32 v11, 64, v10
    v_xor_b32 v12, 128, v10
    v_xor_b32 v13, 192, v10
    v_and_b32 v14, 1, v0
    v_mul_u32_u24 v14, 1280, v14
    v_lshl_add_u32 v14, v8, 4, v14
    v_add_u32 v14, {VEC}, v14
    s_waitcnt vmcnt(10)
    s_barrier
    """)
    RX, RV, RA = 28, 44, 60
    for kb in range(5):
        for p in range(4):
            a(f"ds_read_b128 {vr(RX+4*p,4)}, v{10+p} offset:{4096*kb}\nds_read_b128 {vr(RV+4*p,4)}, v14 offset:{256*kb+64*p}")
        for p in range(4):
            a(f"s_waitcnt lgkmcnt({6-2*p})")
            a(f"v_mfma_f32_16x16x32_bf16 {vr(RA,4)}, {vr(RV+4*p,4)}, {vr(RX+4*p,4)}, {vr(RA,4) if kb+p else 0}")
    a(f"""
    s_mov_b32 s{sCNT}, 3
    L_hloop:
    s_waitcnt vmcnt(5)
    s_barrier
    """)
    w_next()
    a(f"""
    s_sub_u32 s{sCNT}, s{sCNT}, 1
    s_cmp_lg_u32 s{sCNT}, 0
    s_cbranch_scc1 L_hloop
    v_mul_f32 v10, {f2u(-math.log2(math.e))}, v{RA+1}
    v_exp_f32 v10, v10
    v_mov_b32 v11, v{RA}
    v_add_f32 v10, 1.0, v10
    v_rcp_f32 v10, v10
    v_max_f32_dpp v11, v11, v11 row_ror:1 row_mask:0xf bank_mask:0xf
    s_lshl_b32 s{sT3}, s{sT4}, 6
    s_add_u32 s{sT3}, s{sT3}, {GATE}
    v_max_f32_dpp v11, v11, v11 row_ror:2 row_mask:0xf bank_mask:0xf
    v_lshlrev_b32 v12, 2, v7
    v_add_u32 v12, s{sT3}, v12
    v_max_f32_dpp v11, v11, v11 row_ror:4 row_mask:0xf bank_mask:0xf
    ds_write_b32 v12, v10
    v_max_f32_dpp v11, v11, v11 row_ror:8 row_mask:0xf bank_mask:0xf
    s_waitcnt vmcnt(5)
    s_barrier
    v_cmp_eq_f32 vcc, v11, v{RA}
    s_lshl2_add_u32 s{sT0}, s{sTB}, s{sT4}
    s_ff1_i32_b64 s{sT3}, vcc
    s_and_b32 s{sT3}, s{sT3}, 15
    s_lshl_b32 s{sT0}, s{sT0}, 4
    s_add_u32 s{sT3}, s{sT3}, s{sT0}
    s_add_u32 s{sT0}, s{sT0}, {RC_OFF}
    v_mov_b32 v10, v11
    v_mov_b32 v11, s{sT3}
    s_cmp_eq_u32 s{sHG}, s{sT4}
    s_cbranch_scc0 L_norc1
    s_mov_b64 exec, 1
    buffer_store_dwordx2 v[10:11], off, {srd(WS)}, s{sT0} sc1
    s_mov_b64 exec, -1
    L_norc1:
    s_waitcnt vmcnt(0)
    s_barrier
    """)
    get_nonce(12)
    a(f"""
    s_cmp_eq_u32 s{sHG}, s{sT4}
    s_cbranch_scc0 L_qdone
    v_mov_b32 v12, s{sNONCE}
    s_mov_b64 exec, 1
    buffer_store_dword v12, off, {srd(WS)}, s{sT0} offset:8 sc1
    s_mov_b64 exec, -1
    """)

    Q1 = [16 + 6*i for i in range(4)]; Q2 = [20 + 6*i for i in range(4)]
    K1 = [40, 44]; K2 = [48, 50]; V1 = [52, 56]; V2 = [60, 64]
    S = [68 + 16*i for i in range(4)]; O = [132 + 16*i for i in range(4)]
    vK1, vK2, vV, vIX, vOA, vOB = 1, 2, 3, 4, 14, 15
    a("L_qdone:")
    get_nonce(10)
    a(f"""
    s_bfe_u32 s{sTH}, s{sW}, 0x10001
    s_and_b32 s{sT0}, s{sW}, 1
    s_lshr_b32 s{sJ}, s{sW}, 2
    s_lshl1_add_u32 s{sJ}, s{sJ}, s{sT0}
    s_lshl_b32 s{sT0}, s{sT0}, 1
    s_lshl2_add_u32 s{sQB}, s{sTH}, s{sT0}
    s_xor_b32 s{sT1}, s{sQB}, 2
    s_mul_i32 s{sT2}, s{sQB}, 2816
    s_mul_i32 s{sT3}, s{sT1}, 2816
    s_add_u32 s{sT2}, s{sT2}, {OX}
    s_add_u32 s{sT3}, s{sT3}, {OX}
    v_add_u32 v{vOA}, s{sT2}, v6
    v_add_u32 v{vOB}, s{sT3}, v6
    v_bfe_u32 v10, v0, 4, 1
    v_lshrrev_b32 v11, 5, v0
    v_mul_u32_u24 v10, 640, v10
    v_lshl_add_u32 v{vK1}, v11, 8, v10
    v_lshl_add_u32 v{vK1}, v7, 4, v{vK1}
    v_lshl_add_u32 v{vK2}, v11, 6, v10
    v_lshl_add_u32 v{vK2}, v7, 2, v{vK2}
    v_and_b32 v10, 19, v0
    v_bfe_u32 v12, v0, 2, 1
    v_bfe_u32 v13, v0, 3, 1
    v_lshl_or_b32 v10, v13, 2, v10
    v_bfe_u32 v13, v0, 4, 1
    v_lshlrev_b32 v13, 1, v13
    v_sub_u32 v13, 3, v13
    v_lshlrev_b32 v12, v13, v12
    v_add_u32 v10, v10, v12
    v_mul_u32_u24 v11, 320, v11
    v_lshl_add_u32 v{vV}, v10, 4, v11
    v_mov_b32 v{vIX}, 0xdddddddd
    s_mov_b32 s{sVM}, 0x33ffff
    s_mov_b32 s{sVM+1}, 0x33ffff
    s_mul_i32 s{sT2}, s{sQB}, 1280
    s_mul_i32 s{sT3}, s{sT1}, 1280
    s_lshl2_add_u32 s{sT4}, s{sTH}, s{sJ}
    s_mul_i32 s{sT5}, s{sT4}, 1280
    s_add_u32 s{sT2}, s{sT2}, {QS}
    s_add_u32 s{sT3}, s{sT3}, {QS}
    s_add_u32 s{sT5}, s{sT5}, {QS}
    v_add_u32 v10, s{sT2}, v5
    v_add_u32 v11, s{sT3}, v5
    v_add_u32 v12, s{sT2}, v6
    v_add_u32 v13, s{sT3}, v6
    v_add_u32 v196, s{sT5}, v5
    v_add_u32 v197, s{sT5}, v6
    v_lshrrev_b32 v198, 2, v0
    v_and_b32 v199, 3, v0
    v_lshlrev_b32 v198, 7, v198
    v_lshl_add_u32 v198, v199, 2, v198
    s_lshl_b32 s{sT0}, s{sJ}, 11
    s_add_u32 s{sT0}, s{sT0}, {KVF_OFF}
    s_waitcnt lgkmcnt(0)
    s_barrier
    """)
    stamp("qdone")
    for n in range(4):
        a(f"ds_read_b128 {vr(Q1[n],4)}, v{10+(n>>1)} offset:{1280*(n&1)}\nds_read_b32 v{Q2[n]}, v{12+(n>>1)} offset:{1024+1280*(n&1)}")
    a(f"ds_read_b128 v[200:203], v196\nds_read_b32 v204, v197 offset:1024\nv_mov_b32 v205, 0")
    poll(f"buffer_load_dword v199, v198, {srd(WS)}, s{sT0} offen sc1",
         f"v_cmp_eq_u32 vcc, s{sNONCE}, v199\ns_cmp_eq_u64 vcc, -1")
    stamp("kvrdy")
    def tile_off(inc):
        a(f"""
        s_add_u32 s{sTILE}, s{sTILE}, {inc}
        s_and_b32 s{sTILE}, s{sTILE}, 15
        s_lshl4_add_u32 s{sKVO}, s{sJ}, s{sTILE}
        s_mul_i32 s{sKVO}, s{sKVO}, 2560
        """)
    def ldK(b):
        a(f"buffer_load_dwordx4 {vr(K1[b],4)}, v{vK1}, {srd(WS)}, s{sKVO} offen sc1\n"
          f"buffer_load_dword v{K2[b]}, v{vK2}, {srd(WS)}, s{sKVO} offen offset:512 sc1")
    def ldV(b):
        a(f"s_mov_b64 exec, s[{sVM}:{sVM+1}]\n"
          f"buffer_load_dwordx4 {vr(V1[b],4)}, v{vV}, {srd(WS)}, s{sKVO} offen offset:1280 sc1\n"
          f"buffer_load_dwordx4 {vr(V2[b],4)}, v{vV}, {srd(WS)}, s{sKVO} offen offset:1920 sc1\n"
          f"s_mov_b64 exec, -1")
    def M1(d, kb, q1): a(f"v_mfma_f32_32x32x16_bf16 {vr(d,16)}, {vr(K1[kb],4)}, {vr(q1,4)}, 0")
    def M2(d, kb, q2): a(f"v_mfma_f32_32x32x8_bf16 {vr(d,16)}, {vr(K2[kb],2)}, {vr(q2,2)}, {vr(d,16)}")
    def rowmax(vd, s0, first):
        a(f"v_max3_f32 v{vd}, v{s0}, v{s0+1}, v{s0+1 if first else vd}")
        for i in range(2, 16, 2): a(f"v_max3_f32 v{vd}, v{s0+i}, v{s0+i+1}, v{vd}")
    a(f"""
    L_again:
    v_cmp_gt_u32 vcc, 32, v0
    v_mov_b32 v10, 0x3f80
    v_mov_b32 v11, 0x3f803f80
    v_and_b32 v12, 27, v0
    v_cndmask_b32 v{K2[0]+1}, 0, v10, vcc
    v_cndmask_b32 v{K2[1]+1}, 0, v10, vcc
    v_cmp_eq_u32 vcc, 18, v12
    s_lshr_b32 s{sTILE}, s2, 3
    v_cndmask_b32 v{V1[0]}, 0, v11, vcc
    """)
    for i in range(1, 16): a(f"v_mov_b32 v{V1[0]+i}, v{V1[0]}")
    a(f"s_cmp_lg_u32 s{sPASS}, 0\ns_cbranch_scc1 L_truemax")
    tile_off(0); ldK(0); ldV(0); tile_off(1); ldK(1)
    def zero_ox():
        for i in range(4): a(f"v_mov_b32 v{10+i}, 0")
        a(f"s_mul_i32 s{sT0}, s{sW}, 2816\ns_add_u32 s{sT0}, s{sT0}, {OX}\nv_add_u32 v196, s{sT0}, v5")
        a(f"ds_write_b128 v196, v[10:13]\nds_write_b128 v196, v[10:13] offset:1024\nds_write_b128 v196, v[10:13] offset:1792")
    zero_ox()
    a("s_waitcnt vmcnt(4) lgkmcnt(0)")
    M1(S[0], 0, 200); M2(S[0], 0, 204)
    a(f"s_lshl2_add_u32 s{sT0}, s{sTH}, s{sJ}\ns_lshl_b32 s{sT0}, s{sT0}, 8\ns_add_u32 s{sT0}, s{sT0}, {BIAS}\nv_add_u32 v196, s{sT0}, v6")
    for i in range(64): a(f"v_mov_b32 v{O[0]+i}, 0")
    rowmax(10, S[0], True)
    shift = -1000.0 if force_redo else SHIFT
    a(f"""
    v_mov_b32 v11, v10
    v_permlane32_swap_b32 v10, v11
    v_max_f32 v10, v10, v11
    v_sub_f32 v10, {f2u(-shift)}, v10
    v_cvt_pk_bf16_f32 v10, v10, 0
    ds_write_b32 v196, v10
    L_biasrd:
    s_lshl_b32 s{sT0}, s{sQB}, 8
    s_xor_b32 s{sT1}, s{sT0}, 512
    s_add_u32 s{sT0}, s{sT0}, {BIAS}
    s_add_u32 s{sT1}, s{sT1}, {BIAS}
    v_add_u32 v10, s{sT0}, v6
    v_add_u32 v11, s{sT1}, v6
    s_waitcnt lgkmcnt(0)
    s_barrier
    """)
    for n in range(4): a(f"ds_read_b32 v{Q2[n]+1}, v{10+(n>>1)} offset:{256*(n&1)}")
    for i in range(8): a(f"v_mov_b32 v{S[3]+8+i}, 0")
    a(f"""
    s_cmp_ge_u32 s{sW}, 4
    s_cbranch_scc1 L_chores
    s_setprio 2
    s_mov_b32 s{sCNT}, {8-sw}
    s_mov_b32 s{sPH}, 0
    L_start:
    s_waitcnt lgkmcnt(0)
    """)
    stamp("attn0")
    M1(S[0], 0, Q1[0]); M2(S[0], 0, Q2[0])
    a("s_nop 10")

    a(".p2align 3\nL_loop:")
    for t in range(2):
        for q in range(4):
            cur, nxt, prv = S[q], S[(q+1) & 3], S[(q-1) & 3]
            kb = t if q < 3 else t ^ 1
            vb = t if q > 0 else t ^ 1
            def ex(i0, i1):
                for i in range(i0, i1): a(f"v_exp_f32 v{cur+i}, v{cur+i}")
            M1(nxt, kb, Q1[(q+1) & 3]); ex(0, 4)
            M2(nxt, kb, Q2[(q+1) & 3]); ex(4, 8)
            if q == 0: a("s_waitcnt vmcnt(2)")
            if q == 2: tile_off(1); ldK(t)
            a(f"v_smfmac_f32_32x32x32_bf16 {vr(O[(q-1)&3],16)}, {vr(V2[vb],4)}, {vr(prv+8,8)}, v{vIX}")
            ex(8, 12)
            a(f"v_smfmac_f32_32x32x32_bf16 {vr(O[q],16)}, {vr(V1[t],4)}, {vr(cur,8)}, v{vIX}")
            ex(12, 16)
            if q == 0: ldV(t ^ 1)
            if q == 2: a("s_waitcnt vmcnt(4)")
    a(f"""
    s_sub_u32 s{sCNT}, s{sCNT}, 1
    s_cmp_lg_u32 s{sCNT}, 0
    s_cbranch_scc1 L_loop
    s_cmp_eq_u32 s{sPH}, 0
    s_cbranch_scc1 L_switch
    v_smfmac_f32_32x32x32_bf16 {vr(O[3],16)}, {vr(V2[1],4)}, {vr(S[3]+8,8)}, v{vIX}
    """)
    stamp("attn1")
    for n in (2, 3):
        for r in range(11): a(f"ds_add_f32 v{vOB}, v{O[n]+r} offset:{(n-2)*2816+r*256}")
    a(f"s_cmp_ge_u32 s{sW}, 4\ns_cbranch_scc0 L_aend")

    a(f"""
    s_lshl2_add_u32 s{sT0}, s{sTB}, s{sTH}
    s_add_u32 s{sT0}, s{sT0}, s{sTH}
    s_mul_i32 s{sT0}, s{sT0}, 20480
    s_add_u32 s{sT0}, s{sT0}, {O_OFF}
    s_and_b32 s{sT1}, s{sQB}, 3
    s_lshl2_add_u32 s{sT1}, s{sHG}, s{sT1}
    s_lshl_b32 s{sT2}, s{sT1}, 7
    s_lshl_b32 s{sT1}, s{sT1}, 9
    s_add_u32 s{sT1}, s{sT1}, s{sT0}
    s_add_u32 s{sT2}, s{sT2}, s{sT0}
    s_add_u32 s{sT2}, s{sT2}, 16384
    v_bfe_u32 v10, v0, 4, 1
    v_lshrrev_b32 v11, 5, v0
    v_mul_u32_u24 v10, 20480, v10
    v_lshl_add_u32 v12, v11, 8, v10
    v_lshl_add_u32 v12, v7, 4, v12
    v_lshl_add_u32 v13, v11, 6, v10
    v_lshl_add_u32 v13, v7, 2, v13
    s_lshl1_add_u32 s{sT3}, s{sTB}, s{sTH}
    s_lshl3_add_u32 s{sT3}, s{sT3}, s{sHG}
    s_lshl_b32 s{sT3}, s{sT3}, 5
    s_and_b32 s{sT4}, s{sW}, 1
    s_add_u32 s{sT3}, s{sT3}, s{sT4}
    s_lshl_b32 s{sT3}, s{sT3}, 2
    s_add_u32 s{sT3}, s{sT3}, {OF_OFF}
    s_waitcnt vmcnt(0) lgkmcnt(0)
    s_barrier
    """)
    PR = S[0]
    for i in range(11): a(f"ds_read2st64_b32 {vr(PR+2*i,2)}, v{vOA} offset0:{2*i} offset1:{2*i+1}")
    a(f"s_mov_b32 s{sT4}, {f2u(2.0**100)}\ns_mov_b32 s{sT5}, {f2u(2.0**-105)}")
    for n in range(2):
        a(f"s_waitcnt lgkmcnt({5 if n == 0 else 0})")
        for r in (10, 0, 1, 2, 3, 4, 5, 6, 7, 8, 9):
            a(f"v_add_f32 v{O[n]+r}, v{O[n]+r}, v{PR+11*n+r}")
            if r == 0: a(f"v_rcp_f32 v{O[n]+11}, v{O[n]+10}")
        a(f"v_max3_f32 v10, |v{O[n]}|, |v{O[n]+1}|, |v{O[n]+2}|")
        for r in (3, 5, 7): a(f"v_max3_f32 v10, |v{O[n]+r}|, |v{O[n]+r+1}|, v10")
        a(f"""
        v_max_f32 v10, |v{O[n]+9}|, v10
        v_max_f32 v11, v10, v{O[n]+10}
        v_cmp_gt_f32 vcc, s{sT4}, v11
        v_cmp_lt_f32 s[{58}:{59}], s{sT5}, v10
        """.replace("v_max_f32 v10, |", "v_max_f32_e64 v10, |"))
        if prof: pass
        for r in range(10): a(f"v_mul_f32 v{O[n]+r}, v{O[n]+r}, v{O[n]+11}")
        a(f"s_and_b64 vcc, vcc, s[58:59]")
        for r in range(5): a(f"v_cvt_pk_bf16_f32 v{O[2]+6*n+r}, v{O[n]+2*r}, v{O[n]+2*r+1}")
        a(f"s_cmp_eq_u64 vcc, -1\ns_cbranch_scc1 L_ok{n}\ns_cmp_eq_u32 s{sPASS}, 0\ns_cbranch_scc1 L_bad\nL_ok{n}:")
        a(f"buffer_store_dwordx4 {vr(O[2]+6*n,4)}, v12, {srd(WS)}, s{sT1} offen offset:{512*n} sc1")
        a(f"buffer_store_dword v{O[2]+6*n+4}, v13, {srd(WS)}, s{sT2} offen offset:{128*n} sc1")
    stamp("ost")
    a(f"""
    v_mov_b32 v11, {REDO}
    v_mov_b32 v10, s{sNONCE}
    s_barrier
    ds_read_b32 v11, v11
    s_waitcnt vmcnt(0)
    s_mov_b64 exec, 1
    buffer_store_dword v10, off, {srd(WS)}, s{sT3} sc1
    s_mov_b64 exec, -1
    s_waitcnt lgkmcnt(0)
    v_readfirstlane_b32 s{sT0}, v11
    s_cmp_gt_u32 s{sT0}, s{sPASS}
    s_cbranch_scc1 L_redo
    """)
    stamp("ofl")
    a("s_branch L_fin")
    a(f"""
    L_bad:
    v_mov_b32 v11, {REDO}
    v_mov_b32 v10, 1
    ds_write_b32 v11, v10
    s_waitcnt lgkmcnt(0)
    s_barrier
    L_redo:
    s_mov_b32 s{sPASS}, 1
    s_setprio 0
    s_waitcnt vmcnt(0) lgkmcnt(0)
    s_branch L_again
    """)

    a("L_truemax:")
    zero_ox()
    a(f"""
    s_lshl_b32 s{sT0}, s{sW}, 8
    s_add_u32 s{sT0}, s{sT0}, {BIAS}
    v_add_u32 v196, s{sT0}, v6
    v_mov_b32 v10, 0xff800000
    ds_write_b32 v196, v10
    s_mov_b32 s{sCNT}, 16
    """)
    for n in range(4): a(f"v_mov_b32 v{Q2[n]+1}, 0\nv_mov_b32 v{200+n}, v10")
    a("s_waitcnt lgkmcnt(0)\ns_barrier\nL_tm:")
    tile_off(1); ldK(0)
    a("s_waitcnt vmcnt(0)")
    for n in range(4): M1(S[n], 0, Q1[n]); M2(S[n], 0, Q2[n])
    for n in range(4): rowmax(200+n, S[n], False)
    a(f"""
    s_sub_u32 s{sCNT}, s{sCNT}, 1
    s_cmp_lg_u32 s{sCNT}, 0
    s_cbranch_scc1 L_tm
    s_lshl_b32 s{sT0}, s{sQB}, 8
    s_xor_b32 s{sT1}, s{sT0}, 512
    s_add_u32 s{sT0}, s{sT0}, {BIAS}
    s_add_u32 s{sT1}, s{sT1}, {BIAS}
    v_add_u32 v10, s{sT0}, v6
    v_add_u32 v11, s{sT1}, v6
    """)
    for n in range(4):
        a(f"v_mov_b32 v12, v{200+n}\nv_permlane32_swap_b32 v12, v{200+n}\nv_max_f32 v12, v12, v{200+n}\nds_max_f32 v{10+(n>>1)}, v12 offset:{256*(n&1)}")
    tile_off(0); ldK(0); ldV(0); tile_off(1); ldK(1)
    for i in range(64): a(f"v_mov_b32 v{O[0]+i}, 0")
    a(f"""
    s_waitcnt vmcnt(4) lgkmcnt(0)
    s_barrier
    ds_read_b32 v10, v196
    s_waitcnt lgkmcnt(0)
    v_sub_f32 v10, 0, v10
    v_cvt_pk_bf16_f32 v10, v10, 0
    ds_write_b32 v196, v10
    s_branch L_biasrd
    """)

    CA = 196
    a(f"""
    L_chores:
    s_setprio 1
    s_mov_b32 s{sCNT}, 8
    s_mov_b32 s{sPH}, 1
    s_cmp_lg_u32 s{sPASS}, 0
    s_cbranch_scc1 L_start
    """)
    def row_main(k, r, t):
        a(f"v_lshrrev_b32 v{r}, 4, v{k}\nv_lshl_add_u32 v{r}, v{r}, 2, v{k}")
    def row_left(k, r, t):
        a(f"""
        v_bfe_u32 v{r}, v{k}, 1, 2
        v_lshrrev_b32 v{t}, 4, v{k}
        v_lshl_add_u32 v{r}, v{r}, 1, v{t}
        v_mul_u32_u24 v{r}, 20, v{r}
        v_bfe_u32 v{t}, v{k}, 3, 1
        v_lshl_add_u32 v{r}, v{t}, 1, v{r}
        v_and_b32 v{t}, 1, v{k}
        v_add3_u32 v{r}, v{r}, v{t}, 16
        """)
    a("v_mov_b32 v206, v14")
    w_src_offsets(CA, [row_main, row_left])
    a(f"""
    v_mov_b32 v14, v206
    s_sub_u32 s{sT4}, s{sW}, 4
    s_mul_i32 s{sT3}, s{sHG}, 160
    s_mul_i32 s{sT0}, s{sT4}, {160*1280}
    s_add_u32 s{sT0}, s{sT0}, s{sT3}
    s_mul_i32 s{sT1}, s{sT4}, 5120
    s_add_u32 s{sT1}, s{sT1}, {WO+16*5120}
    """)
    w_issue(CA+5, WOd, sT0, sT1)
    a(f"s_mul_i32 s{sT1}, s{sT4}, 20480\ns_mov_b32 s{sT2}, 4\nL_wo:\ns_waitcnt vmcnt(2)")
    w_issue(CA, WOd, sT0, sT1)
    a(f"""
    s_add_u32 s{sT0}, s{sT0}, {40*1280}
    s_add_u32 s{sT1}, s{sT1}, 5120
    s_sub_u32 s{sT2}, s{sT2}, 1
    s_cmp_lg_u32 s{sT2}, 0
    s_cbranch_scc1 L_wo
    s_cmp_eq_u32 s{sW}, 7
    s_cbranch_scc0 L_start
    """)
    a(f"s_mov_b32 s{sT0}, {RC_OFF}")
    poll(f"buffer_load_dwordx4 v[196:199], v5, {srd(WS)}, s{sT0} offen sc1\nbuffer_load_dwordx4 v[200:203], v5, {srd(WS)}, s{sT0} offen offset:1024 sc1",
         f"v_cmp_eq_u32 vcc, s{sNONCE}, v198\nv_cmp_eq_u32 s[58:59], s{sNONCE}, v202\ns_and_b64 vcc, vcc, s[58:59]\ns_cmp_eq_u64 vcc, -1")
    a(f"""
    v_cmp_gt_f32 vcc, v200, v196
    v_cndmask_b32 v196, v196, v200, vcc
    v_cndmask_b32 v197, v197, v201, vcc
    v_mov_b32 v198, v196
    """)
    for r in (1, 2, 4, 8): a(f"v_max_f32_dpp v198, v198, v198 row_ror:{r} row_mask:0xf bank_mask:0xf")
    a(f"""
    v_mov_b32 v199, v198
    v_permlane16_swap_b32 v198, v199
    v_max_f32 v198, v198, v199
    v_mov_b32 v199, v198
    v_permlane32_swap_b32 v198, v199
    v_max_f32 v198, v198, v199
    v_cmp_eq_f32 vcc, v198, v196
    s_ff1_i32_b64 s{sT0}, vcc
    s_and_b32 s{sT0}, s{sT0}, 63
    v_readlane_b32 s{sIDX}, v197, s{sT0}
    v_mov_b32 v200, {SEL}
    s_and_b32 s{sIDX}, s{sIDX}, 2047
    v_mov_b32 v199, s{sIDX}
    ds_write_b64 v200, v[198:199]
    s_and_b32 s{sT0}, s2, 7
    s_lshr_b32 s{sT1}, s2, 6
    s_lshl3_add_u32 s{sT0}, s{sT1}, s{sT0}
    s_cmp_lt_u32 s{sT0}, 27
    s_cbranch_scc0 L_start
    s_bfe_u32 s{sT1}, s2, 0x30003
    s_lshl3_add_u32 s{sT0}, s{sT0}, s{sT1}
    s_mul_i32 s{sT1}, s{sIDX}, 1280
    s_mov_b32 m0, {XSEL}
    v_mul_u32_u24 v196, 3456, v0
    buffer_load_dwordx4 v5, {srd(X)}, s{sT1} offen lds
    buffer_load_dword v6, {srd(X)}, s{sT1} offen offset:1024 lds
    s_lshl_b32 s{sT1}, s{sT0}, 4
    s_mul_i32 s{sT2}, s{sT0}, 10240
    s_mov_b32 s{sT3}, 0
    L_gu:
    s_add_u32 m0, s{sT3}, {GI}
    s_nop 0
    buffer_load_dwordx4 v196, {srd(WGd)}, s{sT1} offen lds
    s_add_u32 m0, s{sT3}, {UI}
    s_nop 0
    buffer_load_dwordx4 v196, {srd(WUd)}, s{sT1} offen lds
    s_add_u32 m0, s{sT3}, {WD}
    s_add_u32 s{sT1}, s{sT1}, {64*3456}
    buffer_load_dwordx4 v5, {srd(WDd)}, s{sT2} offen lds
    s_add_u32 s{sT2}, s{sT2}, 1024
    s_add_u32 s{sT3}, s{sT3}, 1024
    s_waitcnt vmcnt(0)
    s_cmp_lg_u32 s{sT3}, 10240
    s_cbranch_scc1 L_gu
    v_lshrrev_b32 v196, 2, v7
    v_lshl_add_u32 v197, v8, 3, v196
    v_lshlrev_b32 v197, 4, v197
    v_and_b32 v198, 1, v0
    v_lshl_add_u32 v197, v198, 3, v197
    v_bfe_u32 v198, v0, 1, 1
    v_mul_u32_u24 v198, {UI-GI}, v198
    v_add_u32 v197, v197, v198
    v_add_u32 v197, {GI}, v197
    v_lshlrev_b32 v198, 4, v8
    v_add_u32 v198, {XSEL}, v198
    v_mul_u32_u24 v196, 1280, v196
    v_lshl_add_u32 v196, v8, 5, v196
    v_and_b32 v199, 3, v0
    v_lshl_add_u32 v196, v199, 3, v196
    v_add_u32 v196, {WD}, v196
    """)
    MA, MB, MD = S[0], S[0] + 16, 200
    for kb in range(5):
        for p in range(4):
            s_ = 4*kb + p
            a(f"ds_read_b64_tr_b16 {vr(MA+4*p,2)}, v197 offset:{512*s_}\nds_read_b64_tr_b16 {vr(MA+4*p+2,2)}, v197 offset:{512*s_+64}\nds_read_b128 {vr(MB+4*p,4)}, v198 offset:{64*s_}")
        for p in range(4):
            a(f"s_waitcnt lgkmcnt({9-3*p})")
            a(f"v_mfma_f32_16x16x32_bf16 {vr(MD,4)}, {vr(MA+4*p,4)}, {vr(MB+4*p,4)}, {vr(MD,4) if kb+p else 0}")
    for m in range(10):
        a(f"ds_read_b64_tr_b16 {vr(MA+4*m,2)}, v196 offset:{128*m}\nds_read_b64_tr_b16 {vr(MA+4*m+2,2)}, v196 offset:{128*m+5120}")
    for i in range(4): a(f"v_mov_b32 v{MD+4+i}, v{MD+i}")
    for i in range(4): a(f"v_permlane32_swap_b32 v{MD+i}, v{MD+4+i}")
    for i in range(4): a(f"v_mul_f32 v{MD+8+i}, {f2u(-math.log2(math.e))}, v{MD+i}")
    for i in range(4): a(f"v_exp_f32 v{MD+8+i}, v{MD+8+i}")
    for i in range(4): a(f"v_mul_f32 v{MD+i}, v{MD+i}, v{MD+4+i}")
    for i in range(4): a(f"v_add_f32 v{MD+8+i}, 1.0, v{MD+8+i}")
    for i in range(4): a(f"v_rcp_f32 v{MD+8+i}, v{MD+8+i}")
    a("v_cmp_eq_u32 vcc, v7, v8")
    for i in range(4): a(f"v_mul_f32 v{MD+i}, v{MD+i}, v{MD+8+i}")
    a(f"""
    v_cvt_pk_bf16_f32 v{MD+4}, v{MD}, v{MD+1}
    v_cvt_pk_bf16_f32 v{MD+5}, v{MD+2}, v{MD+3}
    v_mov_b32 v{MD+6}, v{MD+4}
    v_mov_b32 v{MD+7}, v{MD+5}
    v_lshlrev_b32 v197, 6, v7
    v_lshl_add_u32 v197, v8, 4, v197
    v_permlane16_swap_b32 v{MD+4}, v{MD+6}
    v_permlane16_swap_b32 v{MD+5}, v{MD+7}
    """)
    for i in range(4): a(f"v_cndmask_b32 v{MD+4+i}, 0, v{MD+4+i}, vcc")
    a(f"s_mul_i32 s{sT1}, s{sT0}, 2560\ns_add_u32 s{sT1}, s{sT1}, {YP_OFF}\ns_waitcnt lgkmcnt(0)")
    MY = 212
    for m in range(10):
        a(f"v_mfma_f32_16x16x32_bf16 {vr(MY+4*m,4)}, {vr(MA+4*m,4)}, {vr(MD+4,4)}, 0")
    a("s_mov_b32 exec_lo, 0xf000f\ns_mov_b32 exec_hi, 0xf000f")
    for m in range(10):
        a(f"buffer_store_dwordx4 {vr(MY+4*m,4)}, v197, {srd(WS)}, s{sT1} offen offset:{256*m} sc1")
    a(f"""
    s_mov_b64 exec, 1
    v_mov_b32 v196, s{sNONCE}
    s_lshl_b32 s{sT1}, s{sT0}, 5
    s_add_u32 s{sT1}, s{sT1}, {YF_OFF}
    s_waitcnt vmcnt(0)
    buffer_store_dword v196, off, {srd(WS)}, s{sT1} sc1
    s_mov_b64 exec, -1
    s_branch L_start
    """)

    a(f"""
    L_switch:
    s_setprio 0
    s_mov_b32 s{sCNT}, {sw}
    s_mov_b32 s{sPH}, 1
    s_cmp_eq_u32 s{sW}, 3
    s_cbranch_scc0 L_loop
    s_cmp_lg_u32 s{sPASS}, 0
    s_cbranch_scc1 L_loop
    s_and_b32 s{sT0}, s2, 7
    s_lshr_b32 s{sT1}, s2, 6
    s_lshl3_add_u32 s{sT0}, s{sT1}, s{sT0}
    s_cmp_lt_u32 s{sT0}, 27
    s_cbranch_scc1 L_loop
    s_sub_u32 s{sT0}, s{sT0}, 27
    s_bfe_u32 s{sT1}, s2, 0x30003
    s_lshl3_add_u32 s{sT0}, s{sT0}, s{sT1}
    v_min_u32 v196, 53, v0
    v_lshlrev_b32 v196, 7, v196
    s_mov_b32 s{sT1}, {YF_OFF}
    """)
    poll("\n".join(f"buffer_load_dword v{197+i}, v196, {srd(WS)}, s{sT1} offen offset:{32*i} sc1" for i in range(4)),
         f"v_cmp_eq_u32 vcc, s{sNONCE}, v197\n" +
         "\n".join(f"v_cmp_eq_u32 s[58:59], s{sNONCE}, v{197+i}\ns_and_b64 vcc, vcc, s[58:59]" for i in range(1, 4)) +
         "\ns_cmp_eq_u64 vcc, -1")
    a(f"""
    v_lshrrev_b32 v196, 2, v0
    v_mul_u32_u24 v196, 2560, v196
    v_and_b32 v197, 3, v0
    v_lshl_add_u32 v196, v197, 4, v196
    s_lshl_b32 s{sT1}, s{sT0}, 6
    s_add_u32 s{sT1}, s{sT1}, {YP_OFF}
    """)
    for i in range(4): a(f"v_mov_b32 v{252+i}, 0")
    for n in range(14):
        if n == 13: a("s_mov_b32 exec_hi, 0")
        a(f"buffer_load_dwordx4 {vr(200+4*n,4)}, v196, {srd(WS)}, s{sT1} offen sc1\ns_add_u32 s{sT1}, s{sT1}, {16*2560}")
    a("s_mov_b64 exec, -1")
    for n in range(1, 14):
        a(f"s_waitcnt vmcnt({13-n})")
        a(f"v_pk_add_f32 v[200:201], v[200:201], {vr(200+4*n,2)}\nv_pk_add_f32 v[202:203], v[202:203], {vr(202+4*n,2)}")
    for r in (4, 8):
        for i in range(4): a(f"v_add_f32_dpp v{200+i}, v{200+i}, v{200+i} row_ror:{r} row_mask:0xf bank_mask:0xf")
    for pl in (16, 32):
        for i in range(4): a(f"v_mov_b32 v{204+i}, v{200+i}")
        for i in range(4): a(f"v_permlane{pl}_swap_b32 v{200+i}, v{204+i}")
        for i in range(4): a(f"v_add_f32 v{200+i}, v{200+i}, v{204+i}")
    a(f"""
    s_lshl_b32 s{sT1}, s{sT0}, 6
    s_add_u32 s{sT1}, s{sT1}, {Y2_OFF}
    s_mov_b64 exec, 15
    buffer_store_dwordx4 v[200:203], v5, {srd(WS)}, s{sT1} offen sc1
    s_mov_b64 exec, 1
    v_mov_b32 v196, s{sNONCE}
    s_lshl_b32 s{sT1}, s{sT0}, 5
    s_add_u32 s{sT1}, s{sT1}, {Y2F_OFF}
    s_waitcnt vmcnt(0)
    buffer_store_dword v196, off, {srd(WS)}, s{sT1} sc1
    s_mov_b64 exec, -1
    s_branch L_loop
    """)

    PA, PO, PX, PW, NSET = 40, 60, 140, 152, 5
    a("L_aend:")
    for n in (0, 1):
        for r in range(11): a(f"ds_add_f32 v{vOA}, v{O[n]+r} offset:{n*2816+r*256}")
    w_read_base(10, 11)
    a(f"""
    s_lshl2_add_u32 s{sT0}, s{sTB}, s{sW}
    s_mul_i32 s{sT0}, s{sT0}, 20480
    s_mul_i32 s{sT1}, s{sHG}, 160
    s_add_u32 s{sT1}, s{sT1}, s{sT0}
    s_add_u32 s{sT0}, s{sT0}, {O_OFF}
    v_add_u32 v11, 51200, v10
    v_mul_u32_u24 v12, 1280, v7
    v_mul_u32_u24 v13, 40, v8
    v_add_u32 v12, v12, v13
    s_lshl_b32 s{sT2}, s{sW}, 6
    s_add_u32 s{sT2}, s{sT2}, {GATE}
    v_lshlrev_b32 v13, 2, v7
    v_add_u32 v13, s{sT2}, v13
    s_waitcnt vmcnt(0) lgkmcnt(0)
    buffer_load_dwordx4 {vr(PX,4)}, v12, {srd(X)}, s{sT1} offen
    buffer_load_dwordx4 {vr(PX+4,4)}, v12, {srd(X)}, s{sT1} offen offset:16
    buffer_load_dwordx2 {vr(PX+8,2)}, v12, {srd(X)}, s{sT1} offen offset:32
    v_mov_b32 v252, {REDO}
    s_barrier
    """)
    def pw(s_, c):
        for j in range(2):
            off = 5120*s_ + 1280*j + 8*c
            a(f"ds_read_b64_tr_b16 {vr(PW+20*(s_%NSET)+4*c+2*j,2)}, v{10 if s_ < 10 else 11} offset:{off if s_ < 10 else off-51200}")
    a(f"ds_read_b32 v{PX+10}, v13")
    for s_ in range(NSET):
        for c in range(5): pw(s_, c)
    a(f"""
    s_lshr_b32 s{sT2}, s{sW}, 1
    s_lshl1_add_u32 s{sT2}, s{sTB}, s{sT2}
    s_lshl_b32 s{sT2}, s{sT2}, 10
    s_add_u32 s{sT2}, s{sT2}, {OF_OFF}
    v_bfe_u32 v13, v0, 1, 3
    v_lshlrev_b32 v13, 7, v13
    v_and_b32 v253, 1, v0
    v_lshl_add_u32 v13, v253, 2, v13
    s_barrier
    ds_read_b96 v[252:254], v252
    s_waitcnt lgkmcnt(0)
    v_readfirstlane_b32 s{sT3}, v252
    v_readfirstlane_b32 s{sIDX}, v254
    s_cmp_gt_u32 s{sT3}, s{sPASS}
    s_cbranch_scc1 L_redo
    """.replace("ds_read_b96 v[252:254], v252", f"ds_read_b32 v254, v252 offset:8\nds_read_b32 v253, v252 offset:4\nds_read_b32 v252, v252"))
    poll(f"buffer_load_dword v252, v13, {srd(WS)}, s{sT2} offen sc1",
         f"v_cmp_eq_u32 vcc, s{sNONCE}, v252\ns_cmp_eq_u64 vcc, -1")
    stamp("ordy")
    for s_ in range(16):
        a(f"buffer_load_dwordx4 {vr(PO+4*s_,4)}, v5, {srd(WS)}, s{sT0} offen offset:{1024*(s_&3)} sc1")
        if s_ & 3 == 3: a(f"s_add_u32 s{sT0}, s{sT0}, 4096")
    for n in range(16):
        a(f"buffer_load_dword v{PO+64+n}, v6, {srd(WS)}, s{sT0} offen offset:{256*n} sc1")
    for s_ in range(20):
        a(f"s_waitcnt vmcnt({31-s_ if s_ < 16 else 4*(19-s_)})" + (" lgkmcnt(10)" if NSET <= s_ < 20-NSET+1 else (" lgkmcnt(0)" if s_ == 20-NSET+1 else "")))
        for c in range(5):
            a(f"v_mfma_f32_16x16x32_bf16 {vr(PA+4*c,4)}, {vr(PW+20*(s_%NSET)+4*c,4)}, {vr(PO+4*s_,4)}, {vr(PA+4*c,4) if s_ else 0}")
            if s_ + NSET < 20: pw(s_+NSET, c)
    XB = PO
    for i in range(10):
        a(f"v_lshlrev_b32 v{XB+2*i}, 16, v{PX+i}\nv_and_b32 v{XB+2*i+1}, 0xffff0000, v{PX+i}")
    a(f"""
    s_lshl2_add_u32 s{sT2}, s{sTB}, s{sW}
    s_lshr_b32 s{sT3}, s{sIDX}, 4
    s_cmp_eq_u32 s{sT2}, s{sT3}
    s_cbranch_scc0 L_mix
    v_min_u32 v13, 4, v0
    v_lshlrev_b32 v13, 5, v13
    s_mul_i32 s{sT2}, s{sHG}, 160
    s_add_u32 s{sT2}, s{sT2}, {Y2F_OFF}
    """)
    poll(f"buffer_load_dword v252, v13, {srd(WS)}, s{sT2} offen sc1",
         f"v_cmp_eq_u32 vcc, s{sNONCE}, v252\ns_cmp_eq_u64 vcc, -1")
    YB = PO + 20
    a(f"""
    v_mul_u32_u24 v13, 80, v8
    s_mul_i32 s{sT2}, s{sHG}, 320
    s_add_u32 s{sT2}, s{sT2}, {Y2_OFF}
    """)
    for i in range(5): a(f"buffer_load_dwordx4 {vr(YB+4*i,4)}, v13, {srd(WS)}, s{sT2} offen offset:{16*i} sc1")
    a(f"""
    v_mul_f32 v253, {f2u(-math.log2(math.e))}, v253
    v_exp_f32 v253, v253
    s_and_b32 s{sT3}, s{sIDX}, 15
    v_add_f32 v253, 1.0, v253
    v_rcp_f32 v253, v253
    v_cmp_eq_u32 vcc, s{sT3}, v7
    s_waitcnt vmcnt(0)
    s_mov_b64 exec, vcc
    """)
    for i in range(20): a(f"v_fmac_f32 v{XB+i}, v253, v{YB+i}")
    a("s_mov_b64 exec, -1\nL_mix:")
    a(f"v_sub_f32 v13, 1.0, v{PX+10}")
    for i in range(20): a(f"v_mul_f32 v{XB+i}, v13, v{XB+i}")
    for i in range(20): a(f"v_fmac_f32 v{XB+i}, v{PX+10}, v{PA+i}")
    for i in range(10): a(f"v_cvt_pk_bf16_f32 v{PX+i}, v{XB+2*i}, v{XB+2*i+1}")
    a(f"""
    buffer_store_dwordx4 {vr(PX,4)}, v12, {srd(OUT)}, s{sT1} offen
    buffer_store_dwordx4 {vr(PX+4,4)}, v12, {srd(OUT)}, s{sT1} offen offset:16
    buffer_store_dwordx2 {vr(PX+8,2)}, v12, {srd(OUT)}, s{sT1} offen offset:32
    L_fin:
    """)
    if prof:
        a(f"s_waitcnt vmcnt(0)\ns_memrealtime s[{sT2}:{sT3}]\ns_waitcnt lgkmcnt(0)")
        a(f"s_lshl3_add_u32 s{sT0}, s2, s{sW}\ns_lshl_b32 s{sT0}, s{sT0}, 6\ns_add_u32 s{sT0}, s{sT0}, {PROF_OFF}\ns_mov_b64 exec, 1")
        for n in range(len(stamps)):
            a(f"v_mov_b32 v10, s{60+2*n}\nbuffer_store_dword v10, off, {srd(WS)}, s{sT0} offset:{4*n}")
        a(f"v_mov_b32 v10, s{sT2}\nbuffer_store_dword v10, off, {srd(WS)}, s{sT0} offset:{4*len(stamps)}")
        stamps.append("end")
        a(f"v_mov_b32 v10, s{sSW}\nbuffer_store_dword v10, off, {srd(WS)}, s{sT0} offset:{4*len(stamps)}")
        stamps.append("start")
    a("L_end:\ns_endpgm")
    bad = a.check_edges()
    for b in bad: print("EDGE HAZARD", b, file=sys.stderr)
    assert not bad
    ref = open(f"cdna_kernels/{NAME}.s.ref").read().split("\n")
    head = [l for l in ref if l.startswith(";") and "@launch" not in l]
    out = "\n".join(head) + f"\n; @launch grid=(256,1,1) block=(512,1,1) lds={LDS_BYTES}\n"
    out += f""".amdgcn_target "amdgcn-amd-amdhsa--gfx950"
.text
.globl {NAME}_kernel
.p2align 8
.type {NAME}_kernel,@function
{NAME}_kernel:
""" + a.text() + f""".section .rodata,"a"
.p2align 6
.amdhsa_kernel {NAME}_kernel
  .amdhsa_next_free_vgpr 256
  .amdhsa_next_free_sgpr 102
  .amdhsa_accum_offset 256
  .amdhsa_group_segment_fixed_size 0
  .amdhsa_kernarg_size 112
  .amdhsa_user_sgpr_count 2
  .amdhsa_user_sgpr_kernarg_segment_ptr 1
  .amdhsa_system_sgpr_workgroup_id_x 1
.end_amdhsa_kernel
"""
    return out, stamps

if __name__ == "__main__":
    out, _ = gen()
    open(sys.argv[1] if len(sys.argv) > 1 else f"cdna_kernels/{NAME}.s", "w").write(out)
```

```python
import sys, struct, math
from asmlib import Asm

NAME = "gated_mix__grouped_kv_mqa__moe_arch_mod__prompt"

def f2u(x): return hex(struct.unpack("<I", struct.pack("<f", x))[0])

KV_OFF, KVF_OFF, RC_OFF, YF_OFF, Y2_OFF, Y2F_OFF, OF_OFF, YP_OFF, PROF_OFF, O_OFF = (
    0, 0x28000, 0x2A000, 0x2B000, 0x2D000, 0x2E000, 0x30000, 0x40000, 0xD0000, 0x100000)
WS_BYTES = 0x380000
XS, WR, WKV, VEC, QS, MISC = 0, 81920, 122880, 148480, 151040, 161280
CNT, REDO, SEL, MCNT, MDONE, AFL, GATE, BIAS = MISC, MISC + 4, MISC + 8, MISC + 16, MISC + 20, MISC + 32, MISC + 256, MISC + 512
WO, OXA, OXB, GI, XSEL, WD = 0, 102400, 126976, 124928, 145536, 151040
UI = GI + 10240 + 64
LDS_BYTES = 163840
SHIFT = 100.0
QSCALE = math.log2(math.e) / math.sqrt(20.0)

sW, sTB, sHG, sROT, sSTKV = 3, 4, 5, 6, 7
X, WQ, WKVd, WOd, WRd, GWd, WGd, WUd, WDd, OUT, DBG, WS = [8 + 4 * i for i in range(12)]
sNONCE, sTH, sJ, sKVO, sCNT, sSW, sPASS, sSPIN, sT0, sT1, sT2, sT3, sT4, sT5, sVM = 84, 85, 86, 87, 88, 89, 90, 91, 92, 93, 94, 95, 96, 97, 98
sTILE, sQB, sIDX, sNEXT = 100, 101, 56, 57
JOB = WKVd
sJN, sJS, sJD, sJSS, sJDS, sJW, sJWS, sJWD = WRd, WRd+1, WRd+2, WRd+3, GWd, GWd+1, GWd+2, GWd+3
def srd(b): return f"s[{b}:{b+3}]"
def vr(b, n): return f"v[{b}:{b+n-1}]" if n > 1 else f"v{b}"

def gen(prof=False, spin=1 << 22, sw=2, force_redo=False):
    a = Asm()
    stamps = []
    def stamp(name):
        if diag and diag[0] == name:
            a("s_memrealtime s[60:61]")
        if prof:
            n = len(stamps); stamps.append(name)
            assert n < 12
            a(f"s_memrealtime s[{60+2*n}:{61+2*n}]")
    uid = [0]
    def lab(p):
        uid[0] += 1; return f"L_{p}_{uid[0]}"
    def poll(load, check):
        l, d = lab("poll"), lab("pdone")
        a(f"s_mov_b32 s{sSPIN}, {spin}\n{l}:\n{load}\ns_waitcnt vmcnt(0)\n{check}\ns_cbranch_scc1 {d}")
        a(f"s_sub_u32 s{sSPIN}, s{sSPIN}, 1\ns_cbranch_scc0 {l}\n{d}:")
    def get_nonce(vt):
        d = lab("nz")
        a(f"s_cmp_lg_u32 s{sNONCE}, 0\ns_cbranch_scc1 {d}")
        poll(f"buffer_load_dword v{vt}, off, {srd(DBG)}, 0 sc1",
             f"v_readfirstlane_b32 s{sNONCE}, v{vt}\ns_cmp_lg_u32 s{sNONCE}, 0")
        a(f"{d}:")
    def mod5(s, times=1):
        for _ in range(times):
            a(f"s_cmp_ge_u32 s{s}, 5\ns_cselect_b32 s{sT5}, 5, 0\ns_sub_u32 s{s}, s{s}, s{sT5}")

    def lds_spin(vaddr, vt, target, off=0):
        l, d = lab("ls"), lab("lsd")
        a(f"""
        s_mov_b32 s{sSPIN}, {spin}
        {l}:
        ds_read_b32 v{vt}, v{vaddr} offset:{off}
        s_waitcnt lgkmcnt(0)
        v_readfirstlane_b32 s{sT5}, v{vt}
        s_cmp_ge_u32 s{sT5}, {target}
        s_cbranch_scc1 {d}
        s_sub_u32 s{sSPIN}, s{sSPIN}, 1
        s_cbranch_scc0 {l}
        {d}:
        """)
    def lds_inc(vaddr, vone, off=0):
        a(f"s_mov_b64 exec, 1\nds_add_u32 v{vaddr}, v{vone} offset:{off}\ns_mov_b64 exec, -1")
    def w_k_of(vc, vk, vch, vt):
        a(f"""
        v_mul_hi_u32 v{vt}, v{vc}, s{sT5}
        v_mul_u32_u24 v{vk}, 10, v{vt}
        v_sub_u32 v{vch}, v{vc}, v{vk}
        v_and_b32 v{vk}, 19, v{vt}
        v_bfe_u32 v{vc}, v{vt}, 2, 1
        v_lshl_or_b32 v{vk}, v{vc}, 3, v{vk}
        v_bfe_u32 v{vc}, v{vt}, 3, 1
        v_lshl_or_b32 v{vk}, v{vc}, 2, v{vk}
        """)
    def w_src_offsets(vd):
        a(f"s_mov_b32 s{sT5}, 0x1999999a")
        for i in range(5):
            a(f"v_add_u32 v10, {64*i}, v0")
            w_k_of(10, 11, 12, 13)
            a(f"v_mul_u32_u24 v11, 1280, v11\nv_lshl_add_u32 v{vd+i}, v12, 4, v11")
            if 0 < i < 4: a(f"v_subrev_u32 v{vd+i}, {1024*i}, v{vd+i}")
    def w_read_base(vd, vt):
        a(f"""
        v_lshrrev_b32 v{vd}, 5, v0
        v_lshlrev_b32 v{vd}, 4, v{vd}
        v_bfe_u32 v{vt}, v0, 2, 3
        v_add_u32 v{vd}, v{vd}, v{vt}
        v_and_b32 v{vt}, 3, v0
        v_lshl_add_u32 v{vd}, v{vd}, 2, v{vt}
        v_mul_u32_u24 v{vd}, 40, v{vd}
        """)

    sW3 = sTILE
    a(f"""
    s_cmpk_lt_u32 s2, 256
    s_cbranch_scc0 L_end
    s_load_dwordx16 s[56:71], s[0:1], 0
    s_load_dwordx8 s[72:79], s[0:1], 64
    s_load_dwordx4 s[80:83], s[0:1], 96
    s_memrealtime s[{sT0}:{sT1}]
    v_lshrrev_b32 v1, 6, v0
    v_and_b32 v0, 63, v0
    v_readfirstlane_b32 s{sW}, v1
    s_and_b32 s{sTB}, s2, 31
    s_lshr_b32 s{sHG}, s2, 5
    s_lshr_b32 s{sROT}, s{sTB}, 3
    s_add_u32 s{sROT}, s{sROT}, s{sHG}
    s_lshr_b32 s{sSTKV}, s{sHG}, 1
    s_and_b32 s{sW3}, s{sW}, 3
    s_mov_b32 s{sNONCE}, 0
    s_mov_b32 s{sPASS}, 0
    """)
    if not rot: a(f"s_mov_b32 s{sROT}, 0")
    mod5(sROT, 2)
    for b, n in ((X, 2621440), (WKVd, 25600), (WRd, 1280), (GWd, 1280), (WQ, 819200), (WOd, 819200),
                 (WGd, 2211840), (WUd, 2211840), (WDd, 2211840), (OUT, 2621440), (DBG, 256), (WS, WS_BYTES)):
        a(f"s_mov_b32 s{b+2}, {n}\ns_mov_b32 s{b+3}, 0x20000")
    a(f"""
    v_lshlrev_b32 v5, 4, v0
    v_lshlrev_b32 v6, 2, v0
    v_and_b32 v7, 15, v0
    v_lshrrev_b32 v8, 4, v0
    v_xor_b32 v9, v7, v8
    v_lshlrev_b32 v9, 4, v9
    s_lshl_b32 s{sT2}, s{sW3}, 6
    s_mul_i32 s{sT3}, s{sW3}, 5120
    v_xor_b32 v1, s{sT2}, v9
    v_mul_u32_u24 v10, 1280, v8
    v_add3_u32 v1, v1, v10, s{sT3}
    v_lshl_add_u32 v9, v7, 8, v9
    v_mov_b32 v10, 0
    v_add_u32 v11, {MISC}, v6
    ds_write_b32 v11, v10
    s_lshl2_add_u32 s{sT2}, s{sTB}, s{sSTKV}
    s_mul_i32 s{sT2}, s{sT2}, 20480
    s_mul_i32 s{sT3}, s{sSTKV}, 20480
    s_lshl_b32 s{sT4}, s{sW3}, 10
    s_add_u32 s{sT3}, s{sT3}, s{sT4}
    s_waitcnt lgkmcnt(0)
    s_mov_b64 s[{X}:{X+1}], s[56:57]
    s_bitcmp1_b32 s{sHG}, 0
    s_cselect_b64 s[{WKVd}:{WKVd+1}], s[62:63], s[60:61]
    s_mov_b64 s[{WRd}:{WRd+1}], s[68:69]
    s_mov_b64 s[{GWd}:{GWd+1}], s[76:77]
    s_mov_b64 s[{WQ}:{WQ+1}], s[58:59]
    s_mov_b64 s[{WOd}:{WOd+1}], s[64:65]
    s_mov_b64 s[{WGd}:{WGd+1}], s[70:71]
    s_mov_b64 s[{WUd}:{WUd+1}], s[72:73]
    s_mov_b64 s[{WDd}:{WDd+1}], s[74:75]
    s_mov_b64 s[{OUT}:{OUT+1}], s[78:79]
    s_mov_b64 s[{DBG}:{DBG+1}], s[80:81]
    s_mov_b64 s[{WS}:{WS+1}], s[82:83]
    """)
    if prof or diag:
        a(f"s_mov_b32 s{sSW}, s{sT0}")
    stamp("karg")
    a(f"""
    s_cmp_ge_u32 s{sW}, 4
    s_cbranch_scc0 L_cwaves
    """)

    WA = 20
    sBK, sBP, sBD, sBW, sBX = sT0, sT1, sT2, sT3, sKVO
    def block_setup(first):
        a(f"""
        s_mul_i32 s{sBW}, s{sW3}, {32*1280}
        s_mul_i32 s{sT4}, s{sHG}, 160
        s_add_u32 s{sBW}, s{sBW}, s{sT4}
        s_mul_i32 s{sBX}, s{sTB}, 81920
        s_lshl_b32 s{sBK}, s{sW3}, 10
        s_add_u32 s{sBK}, s{sBK}, {4096*first}
        s_mul_i32 s{sBD}, s{sW3}, 5120
        s_add_u32 s{sBD}, s{sBD}, {WR+20480*first}
        s_add_u32 s{sBP}, s{sROT}, {first}
        """)
        if first: mod5(sBP)
    def block_issue():
        for n in range(1, 4):
            a(f"""
            s_add_u32 s{sT4}, s{sSTKV}, {n}
            s_and_b32 s{sT4}, s{sT4}, 3
            s_mul_i32 s{sT4}, s{sT4}, 20480
            s_add_u32 m0, s{sT4}, s{sBK}
            s_lshl_b32 s{sT5}, s{sBP}, 8
            s_add_u32 s{sT4}, s{sT4}, s{sT5}
            s_add_u32 s{sT4}, s{sT4}, s{sBX}
            buffer_load_dwordx4 v1, {srd(X)}, s{sT4} offen lds
            """)
        a(f"s_mov_b32 m0, s{sBD}\ns_mul_i32 s{sT4}, s{sBP}, {128*1280}\ns_add_u32 s{sT4}, s{sT4}, s{sBW}")
        for i in range(4):
            a(f"buffer_load_dwordx4 v{WA+i}, {srd(WQ)}, s{sT4} offen offset:{1024*i} lds")
        a(f"""
        s_add_u32 m0, s{sBD}, 4096
        s_add_u32 s{sBK}, s{sBK}, 4096
        buffer_load_dwordx4 v{WA+4}, {srd(WQ)}, s{sT4} offen lds
        s_add_u32 s{sBP}, s{sBP}, 1
        """)
        mod5(sBP)
        a(f"""
        s_add_u32 s{sBD}, s{sBD}, 20480
        s_cmp_ge_u32 s{sBD}, {WR+3*20480}
        s_cselect_b32 s{sT5}, {3*20480}, 0
        s_sub_u32 s{sBD}, s{sBD}, s{sT5}
        """)

    Q1 = [16 + 6*i for i in range(4)]; Q2 = [20 + 6*i for i in range(4)]
    K1 = [40, 44]; K2 = [48, 50]; V1 = [52, 56]; V2 = [60, 64]
    S = [68 + 16*i for i in range(4)]; O = [132 + 16*i for i in range(4)]
    vK1, vK2, vV, vIX, vJ, vJ2, vM, vONE = 2, 3, 4, 14, 196, 197, 198, 199
    def attn_consts():
        a(f"""
        v_cmp_gt_u32 vcc, 32, v0
        v_mov_b32 v10, 0x3f80
        v_mov_b32 v11, 0x3f803f80
        v_and_b32 v12, 27, v0
        v_cndmask_b32 v{K2[0]+1}, 0, v10, vcc
        v_cndmask_b32 v{K2[1]+1}, 0, v10, vcc
        v_cmp_eq_u32 vcc, 18, v12
        v_mov_b32 v{vIX}, 0xdddddddd
        v_cndmask_b32 v{V1[0]}, 0, v11, vcc
        """)
        for i in range(1, 16): a(f"v_mov_b32 v{V1[0]+i}, v{V1[0]}")
        for i in range(64): a(f"v_mov_b32 v{O[0]+i}, 0")
        for i in range(8): a(f"v_mov_b32 v{S[3]+8+i}, 0")
    def attn_setup():
        a(f"""
        s_bfe_u32 s{sTH}, s{sW}, 0x10001
        s_and_b32 s{sT4}, s{sW}, 1
        s_lshr_b32 s{sJ}, s{sW}, 2
        s_lshl1_add_u32 s{sJ}, s{sJ}, s{sT4}
        s_lshl_b32 s{sT4}, s{sT4}, 1
        s_lshl2_add_u32 s{sQB}, s{sTH}, s{sT4}
        s_mov_b32 s{sVM}, 0x33ffff
        s_mov_b32 s{sVM+1}, 0x33ffff
        v_bfe_u32 v10, v0, 4, 1
        v_lshrrev_b32 v11, 5, v0
        v_mul_u32_u24 v10, 640, v10
        v_lshl_add_u32 v{vK1}, v11, 8, v10
        v_lshl_add_u32 v{vK1}, v7, 4, v{vK1}
        v_lshl_add_u32 v{vK2}, v11, 6, v10
        v_lshl_add_u32 v{vK2}, v7, 2, v{vK2}
        v_and_b32 v10, 19, v0
        v_bfe_u32 v12, v0, 2, 1
        v_bfe_u32 v13, v0, 3, 1
        v_lshl_or_b32 v10, v13, 2, v10
        v_bfe_u32 v13, v0, 4, 1
        v_lshlrev_b32 v13, 1, v13
        v_sub_u32 v13, 3, v13
        v_lshlrev_b32 v12, v13, v12
        v_add_u32 v10, v10, v12
        v_mul_u32_u24 v11, 320, v11
        v_lshl_add_u32 v{vV}, v10, 4, v11
        v_mov_b32 v{vM}, {MISC}
        v_mov_b32 v{vONE}, 1
        s_sub_u32 s{sT4}, s{sW}, 3
        s_max_i32 s{sT4}, s{sT4}, 0
        s_lshl_b32 s{sT4}, s{sT4}, 6
        v_add_u32 v10, s{sT4}, v0
        s_mov_b32 s{sT5}, 0x1999999a
        """)
        w_k_of(10, 11, 12, 13)
        a(f"""
        v_lshrrev_b32 v10, 4, v11
        v_lshl_add_u32 v13, v10, 2, v11
        v_mul_u32_u24 v13, 1280, v13
        v_lshl_add_u32 v{vJ}, v12, 4, v13
        v_bfe_u32 v13, v11, 1, 2
        v_lshl_add_u32 v13, v13, 1, v10
        v_mul_u32_u24 v13, 20, v13
        v_bfe_u32 v10, v11, 3, 1
        v_lshl_add_u32 v13, v10, 1, v13
        v_and_b32 v10, 1, v11
        v_add3_u32 v13, v13, v10, 16
        v_mul_u32_u24 v13, 1280, v13
        v_lshl_add_u32 v{vJ2}, v12, 4, v13
        """)
        attn_consts()
    def tile_off(inc):
        a(f"""
        s_add_u32 s{sTILE}, s{sTILE}, {inc}
        s_and_b32 s{sTILE}, s{sTILE}, 15
        s_lshl4_add_u32 s{sKVO}, s{sJ}, s{sTILE}
        s_mul_i32 s{sKVO}, s{sKVO}, 2560
        """)
    def ldK(b):
        a(f"buffer_load_dwordx4 {vr(K1[b],4)}, v{vK1}, {srd(WS)}, s{sKVO} offen sc1\n"
          f"buffer_load_dword v{K2[b]}, v{vK2}, {srd(WS)}, s{sKVO} offen offset:512 sc1")
    def ldV(b):
        a(f"s_mov_b64 exec, s[{sVM}:{sVM+1}]\n"
          f"buffer_load_dwordx4 {vr(V1[b],4)}, v{vV}, {srd(WS)}, s{sKVO} offen offset:1280 sc1\n"
          f"buffer_load_dwordx4 {vr(V2[b],4)}, v{vV}, {srd(WS)}, s{sKVO} offen offset:1920 sc1\n"
          f"s_mov_b64 exec, -1")
    def first_tiles():
        a(f"s_lshr_b32 s{sTILE}, s2, 3")
        tile_off(0); ldK(0); ldV(0); tile_off(1); ldK(1)

    a(f"s_mov_b32 s{sT1}, s{sROT}\ns_lshl_b32 s{sT0}, s{sW3}, 10")
    for kb in range(5):
        a(f"""
        s_add_u32 m0, s{sT3}, {4096*kb}
        s_lshl_b32 s{sT4}, s{sT1}, 8
        s_add_u32 s{sT4}, s{sT4}, s{sT2}
        buffer_load_dwordx4 v1, {srd(X)}, s{sT4} offen lds
        s_add_u32 m0, s{sT0}, {WKV+5120*kb}
        s_mul_i32 s{sT4}, s{sT1}, 5120
        s_add_u32 s{sT4}, s{sT4}, s{sT0}
        buffer_load_dwordx4 v5, {srd(WKVd)}, s{sT4} offen lds
        s_add_u32 s{sT1}, s{sT1}, 1
        """)
        mod5(sT1)
    def kv_extra(skb):
        a(f"s_add_u32 s{sT1}, s{sROT}, {skb}")
        mod5(sT1)
        a(f"""
        s_mul_i32 s{sT4}, {skb}, 5120
        s_add_u32 m0, s{sT4}, {WKV+4096}
        s_mul_i32 s{sT4}, s{sT1}, 5120
        s_add_u32 s{sT4}, s{sT4}, 4096
        buffer_load_dwordx4 v5, {srd(WKVd)}, s{sT4} offen lds
        s_lshl_b32 s{sT4}, {skb}, 8
        s_add_u32 m0, s{sT4}, {VEC}
        s_lshl_b32 s{sT1}, s{sT1}, 8
        buffer_load_dword v6, {srd(WRd)}, s{sT1} offen lds
        s_add_u32 m0, s{sT4}, {VEC+1280}
        s_nop 0
        buffer_load_dword v6, {srd(GWd)}, s{sT1} offen lds
        """)
    kv_extra(f"s{sW3}")
    a(f"s_cmp_eq_u32 s{sW}, 7\ns_cbranch_scc0 L_kv_b0")
    kv_extra("4")
    a("L_kv_b0:\ns_barrier")
    w_src_offsets(WA)
    attn_setup()
    XF, WF, AC = 200, 68, 220
    a(f"""
    s_mul_i32 s{sT0}, s{sSTKV}, 20480
    s_lshl_b32 s{sT1}, s{sW3}, 6
    v_add_u32 v10, s{sT0}, v9
    v_xor_b32 v10, s{sT1}, v10
    v_lshrrev_b32 v11, 2, v7
    v_lshl_add_u32 v11, v8, 3, v11
    v_mul_u32_u24 v11, 40, v11
    s_mul_i32 s{sT0}, s{sW3}, 1280
    s_add_u32 s{sT0}, s{sT0}, {WKV}
    v_and_b32 v12, 3, v0
    s_bitcmp1_b32 s{sHG}, 0
    s_cselect_b32 s{sT2}, 3, 2
    s_cselect_b32 s{sT3}, 3, 4
    s_cselect_b32 s{sT4}, 32, 8
    v_min_u32 v12, s{sT2}, v12
    v_lshlrev_b32 v12, s{sT3}, v12
    v_add3_u32 v11, v11, v12, s{sT0}
    v_add_u32 v12, s{sT4}, v11
    s_lshl_b32 s{sT0}, s{sW3}, 11
    s_add_u32 s{sT0}, s{sT0}, {QS}
    v_add_u32 v13, s{sT0}, v5
    s_waitcnt vmcnt(0)
    """)
    stamp("kvld")
    lds_inc(vM, vONE)
    lds_spin(vM, 15, 4)
    def kv_rd(kb):
        a(f"ds_read_b128 {vr(XF+4*kb,4)}, v10 offset:{4096*kb}")
        for c in range(2):
            for j in range(2):
                a(f"ds_read_b64_tr_b16 {vr(WF+8*kb+4*c+2*j,2)}, v{11+c} offset:{5120*kb+160*j}")
    for kb in range(5): kv_rd(kb)
    a(f"s_bitcmp1_b32 s{sHG}, 0\ns_cbranch_scc1 L_kv_v")
    for isv in range(2):
        if isv: a("L_kv_v:")
        for kb in range(5):
            a(f"s_waitcnt lgkmcnt({min(15, 20-5*kb)})")
            for c in range(2):
                w_, x_ = vr(WF+8*kb+4*c, 4), vr(XF+4*kb, 4)
                A_, B_ = (x_, w_) if isv else (w_, x_)
                a(f"v_mfma_f32_16x16x32_bf16 {vr(AC+4*c,4)}, {A_}, {B_}, {vr(AC+4*c,4) if kb else 0}")
        if not isv: a("s_branch L_kv_j")
    a(f"""
    L_kv_j:
    s_cmp_eq_u32 s{sW}, 4
    s_cbranch_scc1 L_kv_fin
    s_nop 5
    ds_write_b128 v13, {vr(AC,4)}
    ds_write_b128 v13, {vr(AC+4,4)} offset:1024
    s_waitcnt lgkmcnt(0)
    """)
    lds_inc(vM, vONE)
    a("s_branch L_hq\nL_kv_fin:")
    sKF = sNEXT
    a(f"""
    s_lshr_b32 s{sT3}, s{sSTKV}, 1
    s_lshl1_add_u32 s{sT2}, s{sTB}, s{sT3}
    s_and_b32 s{sT3}, s{sSTKV}, 1
    s_and_b32 s{sT4}, s{sHG}, 1
    s_lshl1_add_u32 s{sT3}, s{sT4}, s{sT3}
    s_lshl2_add_u32 s{sT4}, s{sT2}, s{sT3}
    s_mul_i32 s{sT4}, s{sT4}, 640
    s_lshl_b32 s{sT2}, s{sT2}, 5
    s_add_u32 s{sT2}, s{sT2}, s{sT3}
    s_lshl_b32 s{sT2}, s{sT2}, 2
    s_add_u32 s{sKF}, s{sT2}, {KVF_OFF}
    v_lshrrev_b32 v10, 5, v0
    v_mul_u32_u24 v10, 192, v10
    v_sub_u32 v10, v5, v10
    v_cmp_eq_u32 vcc, 3, v8
    """)
    lds_spin(vM, 15, 7)
    for k in range(1, 4):
        a(f"ds_read_b128 {vr(WF+8*(k-1),4)}, v13 offset:{2048*k}\nds_read_b128 {vr(WF+4+8*(k-1),4)}, v13 offset:{2048*k+1024}")
    for k in range(1, 4):
        a(f"s_waitcnt lgkmcnt({6-2*k})")
        for i in range(0, 8, 2):
            a(f"v_pk_add_f32 {vr(AC+i,2)}, {vr(AC+i,2)}, {vr(WF+8*(k-1)+i,2)}")
    for i in range(4):
        a(f"v_cvt_pk_bf16_f32 v{XF+i}, v{AC+2*i}, v{AC+2*i+1}")
    a(f"""
    s_bitcmp1_b32 s{sHG}, 0
    s_cbranch_scc1 L_kv_sv
    v_cndmask_b32 v{XF+4}, v{XF}, v{XF+1}, vcc
    s_mov_b32 exec_hi, 0
    buffer_store_dwordx4 {vr(XF,4)}, v5, {srd(WS)}, s{sT4} offen sc1
    s_not_b64 exec, exec
    buffer_store_dword v{XF+4}, v6, {srd(WS)}, s{sT4} offen offset:384 sc1
    s_branch L_kv_fl
    L_kv_sv:
    v_permlane16_swap_b32 v{XF}, v{XF+2}
    v_permlane16_swap_b32 v{XF+1}, v{XF+3}
    s_mov_b32 exec_lo, 0xfffff
    s_mov_b32 exec_hi, 0xfffff
    buffer_store_dwordx4 {vr(XF,4)}, v10, {srd(WS)}, s{sT4} offen sc1
    L_kv_fl:
    s_mov_b64 exec, -1
    """)
    stamp("kvst")
    RX, RV, RA = 200, 216, 232
    a(f"""
    L_hq:
    s_buffer_load_dword s{sNONCE}, {srd(DBG)}, 0
    s_mul_i32 s{sT4}, s{sW3}, 20480
    v_add_u32 v10, s{sT4}, v9
    v_xor_b32 v11, 64, v10
    v_xor_b32 v12, 128, v10
    v_xor_b32 v13, 192, v10
    v_and_b32 v15, 1, v0
    v_mul_u32_u24 v15, 1280, v15
    v_lshl_add_u32 v15, v8, 4, v15
    v_add_u32 v15, {VEC}, v15
    """)
    block_setup(2)
    def rg(kb):
        for p in range(4):
            a(f"ds_read_b128 {vr(RX+4*p,4)}, v{10+p} offset:{4096*kb}\nds_read_b128 {vr(RV+4*p,4)}, v15 offset:{256*kb+64*p}")
        for p in range(4):
            a(f"s_waitcnt lgkmcnt({6-2*p})")
            a(f"v_mfma_f32_16x16x32_bf16 {vr(RA,4)}, {vr(RV+4*p,4)}, {vr(RX+4*p,4)}, {vr(RA,4) if kb+p else 0}")
    a("s_barrier")
    block_issue()
    a("s_waitcnt lgkmcnt(0)")
    rg(0)
    a(f"""
    s_barrier
    s_cmp_eq_u32 s{sW}, 4
    s_cbranch_scc0 L_noflag
    s_waitcnt vmcnt(8)
    """)
    get_nonce(236)
    a(f"""
    v_mov_b32 v236, s{sNONCE}
    s_mov_b64 exec, 1
    buffer_store_dword v236, off, {srd(WS)}, s{sKF} sc1
    s_mov_b64 exec, -1
    """)
    stamp("kvfl")
    a("L_noflag:")
    block_issue(); rg(1)
    a("s_waitcnt vmcnt(8)\ns_barrier")
    block_issue(); rg(2)
    a(f"""
    v_lshrrev_b32 v236, 2, v0
    v_and_b32 v237, 3, v0
    v_lshlrev_b32 v236, 7, v236
    v_lshl_add_u32 v236, v237, 2, v236
    s_lshl_b32 s{sT0}, s{sW3}, 11
    s_add_u32 s{sT0}, s{sT0}, {KVF_OFF}
    s_waitcnt vmcnt(8)
    s_barrier
    """)
    rg(3)
    get_nonce(237)
    poll(f"buffer_load_dword v237, v236, {srd(WS)}, s{sT0} offen sc1",
         f"v_cmp_eq_u32 vcc, s{sNONCE}, v237\ns_cmp_eq_u64 vcc, -1")
    stamp("kvrdy")
    a(f"s_mov_b32 s{sT1}, s{sW3}\ns_barrier")
    first_tiles()
    rg(4)
    a(f"""
    s_lshl_b32 s{sT3}, s{sT1}, 6
    s_add_u32 s{sT3}, s{sT3}, {GATE}
    v_lshlrev_b32 v12, 2, v7
    v_add_u32 v12, s{sT3}, v12
    s_lshl2_add_u32 s{sT0}, s{sTB}, s{sT1}
    s_lshl_b32 s{sT0}, s{sT0}, 4
    v_mul_f32 v10, {f2u(-math.log2(math.e))}, v{RA+1}
    v_exp_f32 v10, v10
    v_mov_b32 v11, v{RA}
    v_add_f32 v10, 1.0, v10
    v_rcp_f32 v10, v10
    v_max_f32_dpp v11, v11, v11 row_ror:1 row_mask:0xf bank_mask:0xf
    ds_write_b32 v12, v10
    s_cmp_eq_u32 s{sHG}, s{sT1}
    s_cbranch_scc0 L_qdone
    v_max_f32_dpp v11, v11, v11 row_ror:2 row_mask:0xf bank_mask:0xf
    v_max_f32_dpp v11, v11, v11 row_ror:4 row_mask:0xf bank_mask:0xf
    v_max_f32_dpp v11, v11, v11 row_ror:8 row_mask:0xf bank_mask:0xf
    v_cmp_eq_f32 vcc, v11, v{RA}
    s_ff1_i32_b64 s{sT3}, vcc
    s_and_b32 s{sT3}, s{sT3}, 15
    s_add_u32 s{sT3}, s{sT3}, s{sT0}
    s_add_u32 s{sT0}, s{sT0}, {RC_OFF}
    v_mov_b32 v10, v11
    v_mov_b32 v11, s{sT3}
    s_mov_b64 exec, 1
    buffer_store_dwordx2 v[10:11], off, {srd(WS)}, s{sT0} sc1
    s_mov_b64 exec, -1
    s_branch L_qdone
    """)

    QA, QW, QX = 200, 220, 240
    a(f"""
    L_cwaves:
    s_or_b32 s{sT2}, s2, s{sW}
    s_cmp_eq_u32 s{sT2}, 0
    s_cbranch_scc0 L_nononce
    s_lshl_b32 s{sT1}, s{sT1}, 24
    s_xor_b32 s{sT0}, s{sT0}, s{sT1}
    s_or_b32 s{sT0}, s{sT0}, 1
    v_mov_b32 v10, s{sT0}
    s_mov_b64 exec, 1
    buffer_store_dword v10, off, {srd(DBG)}, 0 sc1
    s_mov_b64 exec, -1
    L_nononce:
    """)
    w_src_offsets(WA)
    block_setup(0)
    a("s_barrier")
    block_issue()
    attn_setup()
    block_issue()
    a(f"""
    s_buffer_load_dword s{sNONCE}, {srd(DBG)}, 0
    s_mul_i32 s{sT0}, s{sW}, 20480
    v_add_u32 v10, s{sT0}, v9
    v_xor_b32 v11, 64, v10
    v_xor_b32 v12, 128, v10
    v_xor_b32 v13, 192, v10
    """)
    w_read_base(16, 15)
    for i in range(20): a(f"v_mov_b32 v{QA+i}, 0")
    a(f"""
    s_mov_b32 s{sT0}, {WR}
    s_mov_b32 s{sCNT}, 5
    s_waitcnt vmcnt(8) lgkmcnt(0)
    """)
    stamp("b3")
    a(f"""
    L_qloop:
    v_add_u32 v15, s{sT0}, v16
    s_barrier
    ds_read_b128 {vr(QX,4)}, v10
    """)
    def wrd(p, c):
        for j in range(2):
            a(f"ds_read_b64_tr_b16 {vr(QW+4*c+2*j,2)}, v15 offset:{5120*p+1280*j+8*c}")
    for c in range(5): wrd(0, c)
    a(f"s_cmp_eq_u32 s{sCNT}, 1\ns_cbranch_scc0 L_qnf")
    first_tiles()
    a("L_qnf:")
    for p in range(4):
        if p < 3: a(f"ds_read_b128 {vr(QX+4*((p+1)&1),4)}, v{11+p}")
        for c in range(5):
            if c in (0, 2, 4): a(f"s_waitcnt lgkmcnt({(7 if c < 4 else 9) if p < 3 else max(6-2*c, 0)})")
            a(f"v_mfma_f32_16x16x32_bf16 {vr(QA+4*c,4)}, {vr(QW+4*c,4)}, {vr(QX+4*(p&1),4)}, {vr(QA+4*c,4)}")
            if p < 3: wrd(p+1, c)
    for p in range(4): a(f"v_add_u32 v{10+p}, 4096, v{10+p}")
    a(f"""
    s_add_u32 s{sT0}, s{sT0}, 20480
    s_cmp_eq_u32 s{sT0}, {WR+3*20480}
    s_cselect_b32 s{sT0}, {WR}, s{sT0}
    s_sub_u32 s{sCNT}, s{sCNT}, 1
    s_cbranch_scc1 L_qend
    s_cmp_eq_u32 s{sCNT}, 0
    s_cbranch_scc1 L_qend
    s_waitcnt vmcnt(0)
    s_branch L_qloop
    L_qend:
    s_mov_b32 s{sT0}, {f2u(QSCALE)}
    s_mul_i32 s{sT1}, s{sTH}, 5120
    s_add_u32 s{sT1}, s{sT1}, {QS}
    s_and_b32 s{sT2}, s{sW}, 1
    s_lshl_b32 s{sT2}, s{sT2}, 4
    v_mul_u32_u24 v10, 1280, v8
    v_add_u32 v10, s{sT1}, v10
    v_add_u32 v11, s{sT2}, v7
    v_lshl_add_u32 v12, v11, 2, v10
    v_lshl_add_u32 v11, v11, 4, v10
    v_add_u32 v12, 1024, v12
    """)
    for i in range(10):
        a(f"v_mul_f32 v{QA+2*i}, s{sT0}, v{QA+2*i}\nv_mul_f32 v{QA+2*i+1}, s{sT0}, v{QA+2*i+1}\nv_cvt_pk_bf16_f32 v{QW+i}, v{QA+2*i}, v{QA+2*i+1}")
        if i == 3: a(f"ds_write_b128 v11, {vr(QW,4)}")
        if i == 7: a(f"ds_write_b128 v11, {vr(QW+4,4)} offset:512")
    a(f"ds_write2_b32 v12, v{QW+8}, v{QW+9} offset0:0 offset1:32")

    def M1(d, kb, q1): a(f"v_mfma_f32_32x32x16_bf16 {vr(d,16)}, {vr(K1[kb],4)}, {vr(q1,4)}, 0")
    def M2(d, kb, q2): a(f"v_mfma_f32_32x32x8_bf16 {vr(d,16)}, {vr(K2[kb],2)}, {vr(q2,2)}, {vr(d,16)}")
    def rowmax(vd, s0, first):
        a(f"v_max3_f32 v{vd}, v{s0}, v{s0+1}, v{s0+1 if first else vd}")
        for i in range(2, 16, 2): a(f"v_max3_f32 v{vd}, v{s0+i}, v{s0+i+1}, v{vd}")
    a(f"""
    L_qdone:
    s_xor_b32 s{sT1}, s{sQB}, 2
    s_mul_i32 s{sT2}, s{sQB}, 1280
    s_mul_i32 s{sT3}, s{sT1}, 1280
    s_lshl2_add_u32 s{sT4}, s{sTH}, s{sJ}
    s_mul_i32 s{sT5}, s{sT4}, 1280
    s_add_u32 s{sT2}, s{sT2}, {QS}
    s_add_u32 s{sT3}, s{sT3}, {QS}
    s_add_u32 s{sT5}, s{sT5}, {QS}
    v_add_u32 v10, s{sT2}, v5
    v_add_u32 v11, s{sT3}, v5
    v_add_u32 v12, s{sT2}, v6
    v_add_u32 v13, s{sT3}, v6
    v_add_u32 v206, s{sT5}, v5
    v_add_u32 v207, s{sT5}, v6
    s_lshl_b32 s{sT4}, s{sT4}, 8
    s_add_u32 s{sT4}, s{sT4}, {BIAS}
    v_add_u32 v15, s{sT4}, v6
    v_mov_b32 v205, 0
    s_waitcnt lgkmcnt(0)
    s_barrier
    """)
    stamp("qdone")
    a(f"ds_read_b128 v[200:203], v206\nds_read_b32 v204, v207 offset:1024")
    for n in range(4):
        a(f"ds_read_b128 {vr(Q1[n],4)}, v{10+(n>>1)} offset:{1280*(n&1)}\nds_read_b32 v{Q2[n]}, v{12+(n>>1)} offset:{1024+1280*(n&1)}")
    a("s_waitcnt vmcnt(4) lgkmcnt(8)")
    M1(S[0], 0, 200); M2(S[0], 0, 204)
    a(f"""
    s_and_b32 s{sT0}, s2, 7
    s_lshr_b32 s{sT1}, s2, 6
    s_lshl3_add_u32 s{sT0}, s{sT1}, s{sT0}
    s_bfe_u32 s{sT1}, s2, 0x30003
    s_cmp_ge_u32 s{sW}, 3
    s_cbranch_scc1 L_jwo
    s_cmp_lt_u32 s{sT0}, 27
    s_cselect_b32 s{sJN}, 10, 0
    s_lshl3_add_u32 s{sT0}, s{sT0}, s{sT1}
    s_mov_b32 s{JOB+2}, 2211840
    s_mov_b32 s{sJDS}, 1024
    s_mov_b32 s{sJWD}, 10240
    s_sub_u32 s{sJW}, 10, s{sT1}
    s_cmp_eq_u32 s{sW}, 2
    s_cbranch_scc1 L_jwd
    s_cmp_eq_u32 s{sW}, 0
    s_cselect_b64 s[{JOB}:{JOB+1}], s[{WGd}:{WGd+1}], s[{WUd}:{WUd+1}]
    s_cselect_b32 s{sJD}, 0, {UI-GI}
    s_add_u32 s{sJD}, s{sJD}, {GI}
    s_mov_b32 s{sJSS}, {64*3456}
    s_lshl_b32 s{sJS}, s{sT0}, 4
    v_mul_u32_u24 v{vJ}, 3456, v0
    s_branch L_jset
    L_jwd:
    s_mov_b64 s[{JOB}:{JOB+1}], s[{WDd}:{WDd+1}]
    s_mov_b32 s{sJD}, {WD}
    s_mov_b32 s{sJSS}, 1024
    s_mul_i32 s{sJS}, s{sT0}, 10240
    v_mov_b32 v{vJ}, v5
    s_branch L_jset
    L_jwo:
    s_mov_b64 s[{JOB}:{JOB+1}], s[{WOd}:{WOd+1}]
    s_mov_b32 s{JOB+2}, 819200
    s_mov_b32 s{sJN}, 16
    s_mov_b32 s{sJDS}, 5120
    s_mov_b32 s{sJWD}, {16*5120}
    s_mov_b32 s{sJSS}, {40*1280}
    s_lshr_b32 s{sT1}, s{sTB}, 3
    s_lshl_b32 s{sT1}, s{sT1}, 2
    s_sub_u32 s{sJW}, 16, s{sT1}
    s_mul_i32 s{sJS}, s{sHG}, 160
    s_sub_u32 s{sJD}, s{sW}, 3
    s_lshl_b32 s{sJD}, s{sJD}, 10
    L_jset:
    s_mul_i32 s{sJWS}, s{sJSS}, s{sJN}
    s_mul_i32 s{sT2}, s{sT1}, s{sJSS}
    s_add_u32 s{sJS}, s{sJS}, s{sT2}
    s_mul_i32 s{sT2}, s{sT1}, s{sJDS}
    s_add_u32 s{sJD}, s{sJD}, s{sT2}
    """)
    rowmax(10, S[0], True)
    shift = -1000.0 if force_redo else SHIFT
    a(f"""
    v_mov_b32 v11, v10
    v_permlane32_swap_b32 v10, v11
    v_max_f32 v10, v10, v11
    v_sub_f32 v10, {f2u(-shift)}, v10
    v_cvt_pk_bf16_f32 v10, v10, 0
    ds_write_b32 v15, v10
    L_biasrd:
    s_lshl_b32 s{sT0}, s{sQB}, 8
    s_xor_b32 s{sT1}, s{sT0}, 512
    s_add_u32 s{sT0}, s{sT0}, {BIAS}
    s_add_u32 s{sT1}, s{sT1}, {BIAS}
    v_add_u32 v10, s{sT0}, v6
    v_add_u32 v11, s{sT1}, v6
    s_mov_b32 s{sCNT}, 8
    s_cmp_ge_u32 s{sW}, 4
    s_cselect_b32 s{sNEXT}, 4, {8-h1}
    s_setprio 2
    s_cbranch_scc1 L_pb
    s_setprio 3
    L_pb:
    s_waitcnt lgkmcnt(1)
    """)
    M1(S[0], 0, Q1[0])
    a("s_waitcnt lgkmcnt(0)\ns_barrier")
    for n in range(4): a(f"ds_read_b32 v{Q2[n]+1}, v{10+(n>>1)} offset:{256*(n&1)}")
    a(f"""
    s_sub_u32 s{sT1}, s{sW}, 4
    s_cmp_eq_u32 s{sHG}, s{sT1}
    s_cbranch_scc0 L_norc
    s_lshl2_add_u32 s{sT0}, s{sTB}, s{sT1}
    s_lshl_b32 s{sT0}, s{sT0}, 4
    s_add_u32 s{sT0}, s{sT0}, {RC_OFF}
    v_mov_b32 v10, s{sNONCE}
    s_waitcnt vmcnt(0)
    s_mov_b64 exec, 1
    buffer_store_dword v10, off, {srd(WS)}, s{sT0} offset:8 sc1
    s_mov_b64 exec, -1
    L_norc:
    s_waitcnt lgkmcnt(0)
    """)
    stamp("attn0")
    M2(S[0], 0, Q2[0])
    a("s_nop 10")

    def job_slot():
        l = lab("nojob")
        a(f"""
        s_cmp_eq_u32 s{sJN}, 0
        s_cbranch_scc1 {l}
        s_mov_b32 m0, s{sJD}
        s_sub_u32 s{sJN}, s{sJN}, 1
        buffer_load_dwordx4 v{vJ}, {srd(JOB)}, s{sJS} offen lds
        s_add_u32 s{sJS}, s{sJS}, s{sJSS}
        s_add_u32 s{sJD}, s{sJD}, s{sJDS}
        s_sub_u32 s{sJW}, s{sJW}, 1
        s_cmp_lg_u32 s{sJW}, 0
        s_cbranch_scc1 {l}
        s_sub_u32 s{sJS}, s{sJS}, s{sJWS}
        s_sub_u32 s{sJD}, s{sJD}, s{sJWD}
        {l}:
        """)
    a(".p2align 3\nL_loop:")
    for t in range(2):
        for q in range(4):
            cur, nxt, prv = S[q], S[(q+1) & 3], S[(q-1) & 3]
            kb = t if q < 3 else t ^ 1
            vb = t if q > 0 else t ^ 1
            def ex(i0, i1):
                for i in range(i0, i1): a(f"v_exp_f32 v{cur+i}, v{cur+i}")
            M1(nxt, kb, Q1[(q+1) & 3]); ex(0, 4)
            M2(nxt, kb, Q2[(q+1) & 3]); ex(4, 8)
            if q == 0: a("s_waitcnt vmcnt(2)")
            if q == 2: tile_off(1); ldK(t); job_slot()
            a(f"v_smfmac_f32_32x32x32_bf16 {vr(O[(q-1)&3],16)}, {vr(V2[vb],4)}, {vr(prv+8,8)}, v{vIX}")
            ex(8, 12)
            a(f"v_smfmac_f32_32x32x32_bf16 {vr(O[q],16)}, {vr(V1[t],4)}, {vr(cur,8)}, v{vIX}")
            ex(12, 16)
            if q == 0: ldV(t ^ 1); job_slot()
            if q == 2: a("s_waitcnt vmcnt(4)")
    a(f"""
    s_sub_u32 s{sCNT}, s{sCNT}, 1
    s_cmp_lg_u32 s{sCNT}, s{sNEXT}
    s_cbranch_scc1 L_loop
    s_cmp_lg_u32 s{sCNT}, 0
    s_cbranch_scc1 L_hook
    v_smfmac_f32_32x32x32_bf16 {vr(O[3],16)}, {vr(V2[1],4)}, {vr(S[3]+8,8)}, v{vIX}
    """)
    stamp("attn1")
    a(f"""
    s_and_b32 s{sT0}, s{sW}, 3
    s_xor_b32 s{sT1}, s{sT0}, 1
    s_mul_i32 s{sT0}, s{sT0}, 6144
    s_mul_i32 s{sT1}, s{sT1}, 6144
    s_cmp_ge_u32 s{sW}, 4
    s_cbranch_scc0 L_aend
    s_add_u32 s{sT1}, s{sT1}, {OXB}
    s_add_u32 s{sT0}, s{sT0}, {OXA}
    v_add_u32 v10, s{sT1}, v5
    v_add_u32 v11, s{sT0}, v5
    """)

    for n in (2, 3):
        for r in range(3): a(f"ds_write_b128 v10, {vr(O[n]+4*r,4)} offset:{(n-2)*3072+r*1024}")
    a(f"""
    s_lshl2_add_u32 s{sT0}, s{sTB}, s{sTH}
    s_add_u32 s{sT0}, s{sT0}, s{sTH}
    s_mul_i32 s{sT0}, s{sT0}, 20480
    s_add_u32 s{sT0}, s{sT0}, {O_OFF}
    s_and_b32 s{sT1}, s{sQB}, 3
    s_lshl2_add_u32 s{sT1}, s{sHG}, s{sT1}
    s_lshl_b32 s{sT2}, s{sT1}, 7
    s_lshl_b32 s{sT1}, s{sT1}, 9
    s_add_u32 s{sT1}, s{sT1}, s{sT0}
    s_add_u32 s{sT2}, s{sT2}, s{sT0}
    s_add_u32 s{sT2}, s{sT2}, 16384
    v_bfe_u32 v10, v0, 4, 1
    v_lshrrev_b32 v15, 5, v0
    v_mul_u32_u24 v10, 20480, v10
    v_lshl_add_u32 v12, v15, 8, v10
    v_lshl_add_u32 v12, v7, 4, v12
    v_lshl_add_u32 v13, v15, 6, v10
    v_lshl_add_u32 v13, v7, 2, v13
    s_lshl1_add_u32 s{sT3}, s{sTB}, s{sTH}
    s_lshl3_add_u32 s{sT3}, s{sT3}, s{sHG}
    s_lshl_b32 s{sT3}, s{sT3}, 5
    s_and_b32 s{sT4}, s{sW}, 1
    s_add_u32 s{sT3}, s{sT3}, s{sT4}
    s_lshl_b32 s{sT3}, s{sT3}, 2
    s_add_u32 s{sT3}, s{sT3}, {OF_OFF}
    s_mov_b32 s{sT4}, {f2u(2.0**100)}
    s_mov_b32 s{sT5}, {f2u(2.0**-105)}
    s_waitcnt lgkmcnt(0)
    s_barrier
    """)
    PR = 200
    for n in range(2):
        for src in range(2):
            for r in range(3):
                a(f"ds_read_b128 {vr(PR+24*n+12*src+4*r,4)}, v11 offset:{src*(OXB-OXA)+n*3072+r*1024}")
    for n in range(2):
        for src in range(2):
            a(f"s_waitcnt lgkmcnt({9-6*n-3*src})")
            for r in (10, 0, 2, 4, 6, 8):
                if r == 10: a(f"v_add_f32 v{O[n]+r}, v{O[n]+r}, v{PR+24*n+12*src+r}")
                else: a(f"v_pk_add_f32 {vr(O[n]+r,2)}, {vr(O[n]+r,2)}, {vr(PR+24*n+12*src+r,2)}")
                if r == 0 and src == 1: a(f"v_rcp_f32 v{O[n]+12}, v{O[n]+10}")
        a(f"v_max3_f32 v10, |v{O[n]}|, |v{O[n]+1}|, |v{O[n]+2}|")
        for r in (3, 5, 7): a(f"v_max3_f32 v10, |v{O[n]+r}|, |v{O[n]+r+1}|, v10")
        a(f"""
        v_max_f32_e64 v10, |v{O[n]+9}|, v10
        v_max_f32 v15, v10, v{O[n]+10}
        v_cmp_gt_f32 vcc, s{sT4}, v15
        v_cmp_lt_f32 s[58:59], s{sT5}, v10
        """)
        for r in range(0, 10, 2): a(f"v_pk_mul_f32 {vr(O[n]+r,2)}, {vr(O[n]+r,2)}, {vr(O[n]+12,2)} op_sel_hi:[1,0]")
        a(f"s_and_b64 vcc, vcc, s[58:59]")
        for r in range(5): a(f"v_cvt_pk_bf16_f32 v{O[2]+6*n+r}, v{O[n]+2*r}, v{O[n]+2*r+1}")
        a(f"s_cmp_eq_u64 vcc, -1\ns_cbranch_scc1 L_ok{n}\ns_cmp_eq_u32 s{sPASS}, 0\ns_cbranch_scc1 L_bad\nL_ok{n}:")
        a(f"buffer_store_dwordx4 {vr(O[2]+6*n,4)}, v12, {srd(WS)}, s{sT1} offen offset:{512*n} sc1")
        a(f"buffer_store_dword v{O[2]+6*n+4}, v13, {srd(WS)}, s{sT2} offen offset:{128*n} sc1")
    stamp("ost")
    a(f"""
    v_mov_b32 v10, s{sNONCE}
    s_barrier
    ds_read_b32 v11, v{vM} offset:{REDO-MISC}
    s_waitcnt vmcnt(0)
    s_mov_b64 exec, 1
    buffer_store_dword v10, off, {srd(WS)}, s{sT3} sc1
    s_mov_b64 exec, -1
    s_waitcnt lgkmcnt(0)
    v_readfirstlane_b32 s{sT0}, v11
    s_cmp_gt_u32 s{sT0}, s{sPASS}
    s_cbranch_scc1 L_redo
    """)
    stamp("ofl")
    a("s_branch L_fin")

    PA, PO, PX, PW, NSET = 40, 60, 140, 152, 5
    a(f"""
    L_aend:
    s_add_u32 s{sT1}, s{sT1}, {OXA}
    s_add_u32 s{sT0}, s{sT0}, {OXA}
    v_add_u32 v10, s{sT1}, v5
    v_add_u32 v11, s{sT0}, v5
    s_lshl_b32 s{sT0}, s{sW}, 2
    s_xor_b32 s{sT1}, s{sT0}, 4
    v_add_u32 v12, s{sT0}, v{vM}
    v_add_u32 v13, s{sT1}, v{vM}
    s_add_u32 s{sT2}, s{sPASS}, 1
    """)
    lds_spin(vM, 15, 1, MDONE-MISC)
    for n in (2, 3):
        for r in range(3): a(f"ds_write_b128 v10, {vr(O[n]+4*r,4)} offset:{(n-2)*3072+r*1024}")
    a("s_waitcnt lgkmcnt(0)")
    lds_inc(12, vONE, AFL-MISC)
    lds_spin(13, 15, f"s{sT2}", AFL-MISC)
    for n in (0, 1):
        for r in range(3): a(f"ds_read_b128 {vr(O[2]+12*n+4*r,4)}, v11 offset:{n*3072+r*1024}")
    for n in (0, 1):
        for r in range(3):
            a("s_waitcnt lgkmcnt(5)")
            for i in (0, 2): a(f"v_pk_add_f32 {vr(O[n]+4*r+i,2)}, {vr(O[n]+4*r+i,2)}, {vr(O[2]+12*n+4*r+i,2)}")
            a(f"ds_write_b128 v11, {vr(O[n]+4*r,4)} offset:{n*3072+r*1024}")
    w_read_base(10, 11)
    a(f"""
    s_lshl2_add_u32 s{sT0}, s{sTB}, s{sW}
    s_mul_i32 s{sT0}, s{sT0}, 20480
    s_mul_i32 s{sT1}, s{sHG}, 160
    s_add_u32 s{sT1}, s{sT1}, s{sT0}
    s_add_u32 s{sT0}, s{sT0}, {O_OFF}
    v_add_u32 v11, 51200, v10
    v_mul_u32_u24 v12, 1280, v7
    v_mul_u32_u24 v13, 40, v8
    v_add_u32 v12, v12, v13
    s_lshl_b32 s{sT2}, s{sW}, 6
    s_add_u32 s{sT2}, s{sT2}, {GATE}
    v_lshlrev_b32 v13, 2, v7
    v_add_u32 v13, s{sT2}, v13
    v_mov_b32 v15, {MISC}
    s_waitcnt vmcnt(0) lgkmcnt(0)
    buffer_load_dwordx4 {vr(PX,4)}, v12, {srd(X)}, s{sT1} offen
    buffer_load_dwordx4 {vr(PX+4,4)}, v12, {srd(X)}, s{sT1} offen offset:16
    buffer_load_dwordx2 {vr(PX+8,2)}, v12, {srd(X)}, s{sT1} offen offset:32
    ds_read_b32 v{PX+10}, v13
    s_lshr_b32 s{sT2}, s{sW}, 1
    s_lshl1_add_u32 s{sT2}, s{sTB}, s{sT2}
    s_lshl_b32 s{sT2}, s{sT2}, 10
    s_add_u32 s{sT2}, s{sT2}, {OF_OFF}
    v_bfe_u32 v13, v0, 1, 3
    v_lshlrev_b32 v13, 7, v13
    v_and_b32 v253, 1, v0
    v_lshl_add_u32 v13, v253, 2, v13
    s_barrier
    s_barrier
    ds_read_b32 v252, v15 offset:{REDO-MISC}
    ds_read_b64 v[254:255], v15 offset:{SEL-MISC}
    """)
    def pw(s_, c):
        for j in range(2):
            off = 5120*s_ + 1280*j + 8*c
            a(f"ds_read_b64_tr_b16 {vr(PW+20*(s_%NSET)+4*c+2*j,2)}, v{10 if s_ < 10 else 11} offset:{off if s_ < 10 else off-51200}")
    for s_ in range(NSET):
        for c in range(5): pw(s_, c)
    a(f"""
    s_waitcnt lgkmcnt(0)
    v_readfirstlane_b32 s{sT3}, v252
    v_readfirstlane_b32 s{sIDX}, v255
    s_cmp_gt_u32 s{sT3}, s{sPASS}
    s_cbranch_scc1 L_redo
    """)
    get_nonce(252)
    poll(f"buffer_load_dword v252, v13, {srd(WS)}, s{sT2} offen sc1",
         f"v_cmp_eq_u32 vcc, s{sNONCE}, v252\ns_cmp_eq_u64 vcc, -1")
    stamp("ordy")
    for s_ in range(16):
        a(f"buffer_load_dwordx4 {vr(PO+4*s_,4)}, v5, {srd(WS)}, s{sT0} offen offset:{1024*(s_&3)} sc1")
        if s_ & 3 == 3: a(f"s_add_u32 s{sT0}, s{sT0}, 4096")
    for n in range(16):
        a(f"buffer_load_dword v{PO+64+n}, v6, {srd(WS)}, s{sT0} offen offset:{256*n} sc1")
    for s_ in range(20):
        a(f"s_waitcnt vmcnt({31-s_ if s_ < 16 else 4*(19-s_)})" + (" lgkmcnt(10)" if NSET <= s_ < 20-NSET+1 else (" lgkmcnt(0)" if s_ == 20-NSET+1 else "")))
        for c in range(5):
            a(f"v_mfma_f32_16x16x32_bf16 {vr(PA+4*c,4)}, {vr(PW+20*(s_%NSET)+4*c,4)}, {vr(PO+4*s_,4)}, {vr(PA+4*c,4) if s_ else 0}")
            if s_ + NSET < 20: pw(s_+NSET, c)
    XB = PO
    for i in range(10):
        a(f"v_lshlrev_b32 v{XB+2*i}, 16, v{PX+i}\nv_and_b32 v{XB+2*i+1}, 0xffff0000, v{PX+i}")
    a(f"""
    s_lshl2_add_u32 s{sT2}, s{sTB}, s{sW}
    s_lshr_b32 s{sT3}, s{sIDX}, 4
    s_cmp_eq_u32 s{sT2}, s{sT3}
    s_cbranch_scc1 L_ysel
    L_mix:
    v_sub_f32 v13, 1.0, v{PX+10}
    """)
    for i in range(20): a(f"v_mul_f32 v{XB+i}, v13, v{XB+i}")
    for i in range(20): a(f"v_fmac_f32 v{XB+i}, v{PX+10}, v{PA+i}")
    for i in range(10): a(f"v_cvt_pk_bf16_f32 v{PX+i}, v{XB+2*i}, v{XB+2*i+1}")
    a(f"""
    buffer_store_dwordx4 {vr(PX,4)}, v12, {srd(OUT)}, s{sT1} offen
    buffer_store_dwordx4 {vr(PX+4,4)}, v12, {srd(OUT)}, s{sT1} offen offset:16
    buffer_store_dwordx2 {vr(PX+8,2)}, v12, {srd(OUT)}, s{sT1} offen offset:32
    s_branch L_fin
    L_ysel:
    v_min_u32 v13, 4, v0
    v_lshlrev_b32 v13, 5, v13
    s_mul_i32 s{sT2}, s{sHG}, 160
    s_add_u32 s{sT2}, s{sT2}, {Y2F_OFF}
    """)
    poll(f"buffer_load_dword v252, v13, {srd(WS)}, s{sT2} offen sc1",
         f"v_cmp_eq_u32 vcc, s{sNONCE}, v252\ns_cmp_eq_u64 vcc, -1")
    YB = PO + 20
    a(f"""
    v_mul_u32_u24 v13, 80, v8
    s_mul_i32 s{sT2}, s{sHG}, 320
    s_add_u32 s{sT2}, s{sT2}, {Y2_OFF}
    """)
    for i in range(5): a(f"buffer_load_dwordx4 {vr(YB+4*i,4)}, v13, {srd(WS)}, s{sT2} offen offset:{16*i} sc1")
    a(f"""
    v_mul_f32 v253, {f2u(-math.log2(math.e))}, v254
    v_exp_f32 v253, v253
    s_and_b32 s{sT3}, s{sIDX}, 15
    v_add_f32 v253, 1.0, v253
    v_rcp_f32 v253, v253
    v_cmp_eq_u32 vcc, s{sT3}, v7
    s_waitcnt vmcnt(0)
    s_mov_b64 exec, vcc
    """)
    for i in range(20): a(f"v_fmac_f32 v{XB+i}, v253, v{YB+i}")
    a("s_mov_b64 exec, -1\ns_branch L_mix")

    def wo_left():
        a(f"""
        v_mov_b32 v{vJ}, v{vJ2}
        s_mov_b32 s{sJN}, 4
        s_mov_b32 s{sJW}, 64
        s_mov_b32 s{sJSS}, {160*1280}
        s_mul_i32 s{sJS}, s{sHG}, 160
        s_sub_u32 s{sJD}, s{sW}, 3
        s_lshl_b32 s{sJD}, s{sJD}, 10
        s_add_u32 s{sJD}, s{sJD}, {16*5120}
        """)
    a(f"""
    L_hook:
    s_cmp_ge_u32 s{sW}, 4
    s_cbranch_scc0 L_hooka
    s_cmp_eq_u32 s{sCNT}, 1
    s_cbranch_scc1 L_hb3
    s_mov_b32 s{sNEXT}, 1
    s_cmp_lg_u32 s{sPASS}, 0
    s_cbranch_scc1 L_loop
    """)
    wo_left()
    a(f"""
    s_branch L_loop
    L_hb3:
    s_setprio 0
    s_mov_b32 s{sNEXT}, 0
    """)
    lds_spin(vM, 15, 1, MDONE-MISC)
    a(f"""
    s_branch L_loop
    L_hooka:
    s_cmp_eq_u32 s{sCNT}, {sw}
    s_cbranch_scc1 L_switch
    s_mov_b32 s{sNEXT}, {sw}
    s_cmp_lg_u32 s{sPASS}, 0
    s_cbranch_scc1 L_loop
    s_cmp_eq_u32 s{sW}, 0
    s_cbranch_scc1 L_moe
    """)
    lds_inc(vM, vONE, MCNT-MISC)
    a("s_branch L_loop")
    a(f"L_moe:\ns_mov_b32 s{sT0}, {RC_OFF}")
    get_nonce(200)
    poll(f"buffer_load_dwordx4 v[200:203], v5, {srd(WS)}, s{sT0} offen sc1\nbuffer_load_dwordx4 v[204:207], v5, {srd(WS)}, s{sT0} offen offset:1024 sc1",
         f"v_cmp_eq_u32 vcc, s{sNONCE}, v202\nv_cmp_eq_u32 s[58:59], s{sNONCE}, v206\ns_and_b64 vcc, vcc, s[58:59]\ns_cmp_eq_u64 vcc, -1")
    a(f"""
    v_cmp_gt_f32 vcc, v204, v200
    v_cndmask_b32 v200, v200, v204, vcc
    v_cndmask_b32 v201, v201, v205, vcc
    v_mov_b32 v202, v200
    """)
    for r in (1, 2, 4, 8): a(f"v_max_f32_dpp v202, v202, v202 row_ror:{r} row_mask:0xf bank_mask:0xf")
    a(f"""
    v_mov_b32 v203, v202
    v_permlane16_swap_b32 v202, v203
    v_max_f32 v202, v202, v203
    v_mov_b32 v203, v202
    v_permlane32_swap_b32 v202, v203
    v_max_f32 v202, v202, v203
    v_cmp_eq_f32 vcc, v202, v200
    s_ff1_i32_b64 s{sT0}, vcc
    s_and_b32 s{sT0}, s{sT0}, 63
    v_readlane_b32 s{sIDX}, v201, s{sT0}
    s_and_b32 s{sIDX}, s{sIDX}, 2047
    v_mov_b32 v203, s{sIDX}
    ds_write_b64 v{vM}, v[202:203] offset:{SEL-MISC}
    s_and_b32 s{sT0}, s2, 7
    s_lshr_b32 s{sT1}, s2, 6
    s_lshl3_add_u32 s{sT0}, s{sT1}, s{sT0}
    s_cmp_lt_u32 s{sT0}, 27
    s_cbranch_scc0 L_moed
    s_bfe_u32 s{sT1}, s2, 0x30003
    s_lshl3_add_u32 s{sT0}, s{sT0}, s{sT1}
    s_mul_i32 s{sT1}, s{sIDX}, 1280
    s_mov_b32 m0, {XSEL}
    v_lshrrev_b32 v10, 2, v7
    buffer_load_dwordx4 v5, {srd(X)}, s{sT1} offen lds
    buffer_load_dword v6, {srd(X)}, s{sT1} offen offset:1024 lds
    v_lshl_add_u32 v11, v8, 3, v10
    v_lshlrev_b32 v11, 4, v11
    v_and_b32 v12, 1, v0
    v_lshl_add_u32 v11, v12, 3, v11
    v_bfe_u32 v12, v0, 1, 1
    v_mul_u32_u24 v12, {UI-GI}, v12
    v_add_u32 v11, v11, v12
    v_add_u32 v11, {GI}, v11
    v_lshlrev_b32 v12, 4, v8
    v_add_u32 v12, {XSEL}, v12
    v_mul_u32_u24 v10, 1280, v10
    v_lshl_add_u32 v10, v8, 5, v10
    v_and_b32 v13, 3, v0
    v_lshl_add_u32 v10, v13, 3, v10
    v_add_u32 v10, {WD}, v10
    """)
    lds_spin(vM, 15, 3, MCNT-MISC)
    a("s_waitcnt vmcnt(0)")
    MA, MB, MD = 212, 228, 200
    for kb in range(5):
        for p in range(4):
            s_ = 4*kb + p
            a(f"ds_read_b64_tr_b16 {vr(MA+4*p,2)}, v11 offset:{512*s_}\nds_read_b64_tr_b16 {vr(MA+4*p+2,2)}, v11 offset:{512*s_+64}\nds_read_b128 {vr(MB+4*p,4)}, v12 offset:{64*s_}")
        for p in range(4):
            a(f"s_waitcnt lgkmcnt({9-3*p})")
            a(f"v_mfma_f32_16x16x32_bf16 {vr(MD,4)}, {vr(MA+4*p,4)}, {vr(MB+4*p,4)}, {vr(MD,4) if kb+p else 0}")
    for m in range(10):
        a(f"ds_read_b64_tr_b16 {vr(MA+4*m,2)}, v10 offset:{128*m}\nds_read_b64_tr_b16 {vr(MA+4*m+2,2)}, v10 offset:{128*m+5120}")
    for i in range(4): a(f"v_mov_b32 v{MD+4+i}, v{MD+i}")
    for i in range(4): a(f"v_permlane32_swap_b32 v{MD+i}, v{MD+4+i}")
    for i in range(4): a(f"v_mul_f32 v{MD+8+i}, {f2u(-math.log2(math.e))}, v{MD+i}")
    for i in range(4): a(f"v_exp_f32 v{MD+8+i}, v{MD+8+i}")
    for i in range(4): a(f"v_mul_f32 v{MD+i}, v{MD+i}, v{MD+4+i}")
    for i in range(4): a(f"v_add_f32 v{MD+8+i}, 1.0, v{MD+8+i}")
    for i in range(4): a(f"v_rcp_f32 v{MD+8+i}, v{MD+8+i}")
    a("v_cmp_eq_u32 vcc, v7, v8")
    for i in range(4): a(f"v_mul_f32 v{MD+i}, v{MD+i}, v{MD+8+i}")
    a(f"""
    v_cvt_pk_bf16_f32 v{MD+4}, v{MD}, v{MD+1}
    v_cvt_pk_bf16_f32 v{MD+5}, v{MD+2}, v{MD+3}
    v_mov_b32 v{MD+6}, v{MD+4}
    v_mov_b32 v{MD+7}, v{MD+5}
    v_lshlrev_b32 v11, 6, v7
    v_lshl_add_u32 v11, v8, 4, v11
    v_permlane16_swap_b32 v{MD+4}, v{MD+6}
    v_permlane16_swap_b32 v{MD+5}, v{MD+7}
    """)
    for i in range(4): a(f"v_cndmask_b32 v{MD+4+i}, 0, v{MD+4+i}, vcc")
    a(f"s_mul_i32 s{sT1}, s{sT0}, 2560\ns_add_u32 s{sT1}, s{sT1}, {YP_OFF}\ns_waitcnt lgkmcnt(0)")
    for m in range(10):
        a(f"v_mfma_f32_16x16x32_bf16 {vr(MA+4*m-4,4)}, {vr(MA+4*m,4)}, {vr(MD+4,4)}, 0")
    a("s_mov_b32 exec_lo, 0xf000f\ns_mov_b32 exec_hi, 0xf000f")
    for m in range(10):
        a(f"buffer_store_dwordx4 {vr(MA+4*m-4,4)}, v11, {srd(WS)}, s{sT1} offen offset:{256*m} sc1")
    a(f"""
    s_mov_b64 exec, 1
    v_mov_b32 v10, s{sNONCE}
    s_lshl_b32 s{sT1}, s{sT0}, 5
    s_add_u32 s{sT1}, s{sT1}, {YF_OFF}
    s_waitcnt vmcnt(0)
    buffer_store_dword v10, off, {srd(WS)}, s{sT1} sc1
    s_mov_b64 exec, -1
    L_moed:
    ds_write_b32 v{vM}, v{vONE} offset:{MDONE-MISC}
    s_branch L_loop
    """)
    a(f"""
    L_switch:
    s_setprio 1
    s_mov_b32 s{sNEXT}, 0
    s_cmp_lg_u32 s{sPASS}, 0
    s_cbranch_scc1 L_loop
    s_cmp_eq_u32 s{sW}, 3
    s_cbranch_scc0 L_sw1
    """)
    wo_left()
    a(f"""
    L_sw1:
    s_cmp_eq_u32 s{sW}, 1
    s_cbranch_scc0 L_loop
    s_and_b32 s{sT0}, s2, 7
    s_lshr_b32 s{sT1}, s2, 6
    s_lshl3_add_u32 s{sT0}, s{sT1}, s{sT0}
    s_cmp_lt_u32 s{sT0}, 27
    s_cbranch_scc1 L_loop
    s_sub_u32 s{sT0}, s{sT0}, 27
    s_bfe_u32 s{sT1}, s2, 0x30003
    s_lshl3_add_u32 s{sT0}, s{sT0}, s{sT1}
    v_min_u32 v10, 53, v0
    v_lshlrev_b32 v10, 7, v10
    s_mov_b32 s{sT1}, {YF_OFF}
    """)
    get_nonce(200)
    poll("\n".join(f"buffer_load_dword v{200+i}, v10, {srd(WS)}, s{sT1} offen offset:{32*i} sc1" for i in range(4)),
         f"v_cmp_eq_u32 vcc, s{sNONCE}, v200\n" +
         "\n".join(f"v_cmp_eq_u32 s[58:59], s{sNONCE}, v{200+i}\ns_and_b64 vcc, vcc, s[58:59]" for i in range(1, 4)) +
         "\ns_cmp_eq_u64 vcc, -1")
    a(f"""
    v_lshrrev_b32 v10, 2, v0
    v_mul_u32_u24 v10, 2560, v10
    v_and_b32 v11, 3, v0
    v_lshl_add_u32 v10, v11, 4, v10
    s_lshl_b32 s{sT1}, s{sT0}, 6
    s_add_u32 s{sT1}, s{sT1}, {YP_OFF}
    """)
    for i in range(4): a(f"v_mov_b32 v{252+i}, 0")
    for n in range(14):
        if n == 13: a("s_mov_b32 exec_hi, 0")
        a(f"buffer_load_dwordx4 {vr(200+4*n,4)}, v10, {srd(WS)}, s{sT1} offen sc1\ns_add_u32 s{sT1}, s{sT1}, {16*2560}")
    a("s_mov_b64 exec, -1")
    for n in range(1, 14):
        a(f"s_waitcnt vmcnt({13-n})")
        a(f"v_pk_add_f32 v[200:201], v[200:201], {vr(200+4*n,2)}\nv_pk_add_f32 v[202:203], v[202:203], {vr(202+4*n,2)}")
    for r in (4, 8):
        for i in range(4): a(f"v_add_f32_dpp v{200+i}, v{200+i}, v{200+i} row_ror:{r} row_mask:0xf bank_mask:0xf")
    for pl in (16, 32):
        for i in range(4): a(f"v_mov_b32 v{204+i}, v{200+i}")
        for i in range(4): a(f"v_permlane{pl}_swap_b32 v{200+i}, v{204+i}")
        for i in range(4): a(f"v_add_f32 v{200+i}, v{200+i}, v{204+i}")
    a(f"""
    s_lshl_b32 s{sT1}, s{sT0}, 6
    s_add_u32 s{sT1}, s{sT1}, {Y2_OFF}
    s_mov_b64 exec, 15
    buffer_store_dwordx4 v[200:203], v5, {srd(WS)}, s{sT1} offen sc1
    s_mov_b64 exec, 1
    v_mov_b32 v10, s{sNONCE}
    s_lshl_b32 s{sT1}, s{sT0}, 5
    s_add_u32 s{sT1}, s{sT1}, {Y2F_OFF}
    s_waitcnt vmcnt(0)
    buffer_store_dword v10, off, {srd(WS)}, s{sT1} sc1
    s_mov_b64 exec, -1
    s_branch L_loop
    """)

    a(f"""
    L_bad:
    ds_write_b32 v{vM}, v{vONE} offset:{REDO-MISC}
    s_waitcnt lgkmcnt(0)
    s_barrier
    L_redo:
    s_mov_b32 s{sPASS}, 1
    s_setprio 0
    s_waitcnt vmcnt(0) lgkmcnt(0)
    v_mov_b32 v{vM}, {MISC}
    v_mov_b32 v{vONE}, 1
    """)
    attn_consts()
    a(f"""
    s_lshl_b32 s{sT0}, s{sW}, 8
    s_add_u32 s{sT0}, s{sT0}, {BIAS}
    v_add_u32 v15, s{sT0}, v6
    v_mov_b32 v10, 0xff800000
    ds_write_b32 v15, v10
    s_mov_b32 s{sCNT}, 16
    """)
    for n in range(4): a(f"v_mov_b32 v{Q2[n]+1}, 0\nv_mov_b32 v{200+n}, v10")
    a("s_waitcnt lgkmcnt(0)\ns_barrier\nL_tm:")
    tile_off(1); ldK(0)
    a("s_waitcnt vmcnt(0)")
    for n in range(4):
        M1(S[0], 0, Q1[n]); M2(S[0], 0, Q2[n]); rowmax(200+n, S[0], False)
    a(f"""
    s_sub_u32 s{sCNT}, s{sCNT}, 1
    s_cmp_lg_u32 s{sCNT}, 0
    s_cbranch_scc1 L_tm
    s_lshl_b32 s{sT0}, s{sQB}, 8
    s_xor_b32 s{sT1}, s{sT0}, 512
    s_add_u32 s{sT0}, s{sT0}, {BIAS}
    s_add_u32 s{sT1}, s{sT1}, {BIAS}
    v_add_u32 v10, s{sT0}, v6
    v_add_u32 v11, s{sT1}, v6
    """)
    for n in range(4):
        a(f"v_mov_b32 v12, v{200+n}\nv_permlane32_swap_b32 v12, v{200+n}\nv_max_f32 v12, v12, v{200+n}\nds_max_f32 v{10+(n>>1)}, v12 offset:{256*(n&1)}")
    first_tiles()
    a(f"""
    s_waitcnt vmcnt(4) lgkmcnt(0)
    s_barrier
    ds_read_b32 v10, v15
    s_waitcnt lgkmcnt(0)
    v_sub_f32 v10, 0, v10
    v_cvt_pk_bf16_f32 v10, v10, 0
    ds_write_b32 v15, v10
    s_branch L_biasrd
    L_fin:
    """)
    if prof:
        a(f"s_waitcnt vmcnt(0)\ns_memrealtime s[{sT2}:{sT3}]\ns_waitcnt lgkmcnt(0)")
        a(f"s_lshl3_add_u32 s{sT0}, s2, s{sW}\ns_lshl_b32 s{sT0}, s{sT0}, 6\ns_add_u32 s{sT0}, s{sT0}, {PROF_OFF}\ns_mov_b64 exec, 1")
        for n in range(len(stamps)):
            a(f"v_mov_b32 v10, s{60+2*n}\nbuffer_store_dword v10, off, {srd(WS)}, s{sT0} offset:{4*n}")
        a(f"v_mov_b32 v10, s{sT2}\nbuffer_store_dword v10, off, {srd(WS)}, s{sT0} offset:{4*len(stamps)}")
        stamps.append("end")
        a(f"v_mov_b32 v10, s{sSW}\nbuffer_store_dword v10, off, {srd(WS)}, s{sT0} offset:{4*len(stamps)}")
        stamps.append("start")
    if diag:
        a(f"s_cmp_eq_u32 s{sW}, {diag[1]}\ns_cbranch_scc0 L_end\ns_waitcnt vmcnt(0)")
        if diag[0] == "end": a("s_memrealtime s[60:61]")
        if diag[0] == "start": a(f"s_mov_b32 s60, s{sSW}")
        a(f"""
        s_waitcnt lgkmcnt(0)
        s_sub_u32 s60, s60, s{sSW}
        s_min_u32 s60, s60, 10000
        s_mul_i32 s60, s60, 10
        s_add_u32 s60, s60, 6000
        L_dg:
        s_memrealtime s[62:63]
        s_waitcnt lgkmcnt(0)
        s_sub_u32 s62, s62, s{sSW}
        s_cmp_lt_u32 s62, s60
        s_cbranch_scc1 L_dg
        """)
    a("L_end:\ns_endpgm")
    bad = a.check_edges()
    for b in bad: print("EDGE HAZARD", b, file=sys.stderr)
    assert not bad
    ref = open(f"cdna_kernels/{NAME}.s.ref").read().split("\n")
    head = [l for l in ref if l.startswith(";") and "@launch" not in l]
    out = "\n".join(head) + f"\n; @launch grid=(256,1,1) block=(512,1,1) lds={LDS_BYTES}\n"
    out += f""".amdgcn_target "amdgcn-amd-amdhsa--gfx950"
.text
.globl {NAME}_kernel
.p2align 8
.type {NAME}_kernel,@function
{NAME}_kernel:
""" + a.text() + f""".section .rodata,"a"
.p2align 6
.amdhsa_kernel {NAME}_kernel
  .amdhsa_next_free_vgpr 256
  .amdhsa_next_free_sgpr 102
  .amdhsa_accum_offset 256
  .amdhsa_group_segment_fixed_size 0
  .amdhsa_kernarg_size 112
  .amdhsa_user_sgpr_count 2
  .amdhsa_user_sgpr_kernarg_segment_ptr 1
  .amdhsa_system_sgpr_workgroup_id_x 1
.end_amdhsa_kernel
"""
    return out, stamps

if __name__ == "__main__":
    out, _ = gen()
    open(sys.argv[1] if len(sys.argv) > 1 else f"cdna_kernels/{NAME}.s", "w").write(out)
```
